```python
import torch

def _softmax(x, axis=-1):
    return torch.softmax(x, dim=axis)

def _gelu(x):
    return torch.nn.functional.gelu(x, approximate='tanh')

def _silu(x):
    return torch.nn.functional.silu(x)

def _sigmoid(x):
    return torch.sigmoid(x)

def _layernorm(x, axis=-1, eps=1e-05):
    m = x.mean(dim=axis, keepdim=True)
    v = x.var(dim=axis, keepdim=True, unbiased=False)
    return (x - m) / torch.sqrt(v + eps)

def _scatter_add(tgt, idx, src, axis=0):
    return tgt.clone().index_add_(axis, idx, src)

def _segment_sum(src, seg, n):
    out = torch.zeros((n,) + src.shape[1:], dtype=src.dtype)
    return out.index_add_(0, seg, src)

def _pad(x, pw):
    flat = tuple((v for pair in reversed(pw) for v in pair))
    return torch.nn.functional.pad(x, flat)
kernel_name = 'standalone__neighborhood_dinat__vision'

def setup_inputs():

    _w = lambda a: (lambda t: t.to(torch.bfloat16) if t.is_floating_point() else t)(torch.as_tensor(a))
    ks, dil, nh = (7, 2, 4)
    H = W = max(ks * dil, 224 // dil * dil)
    C = max(nh, 96 // nh * nh)
    return {'x': _w((lambda *s: torch.randn(*s, dtype=torch.bfloat16) * 0.4)(1, H, W, C)), 'wqkv': _w((lambda *s: torch.randn(*s, dtype=torch.bfloat16) * 0.4)(C, 3 * C)), 'wo': _w((lambda *s: torch.randn(*s, dtype=torch.bfloat16) * 0.4)(C, C)), 'rpb': _w((lambda *s: torch.randn(*s, dtype=torch.bfloat16) * 0.4)(nh, 2 * ks - 1, 2 * ks - 1))}

def reference(x, wqkv, wo, rpb):
    B, H, W, C = x.shape
    ks, dil, nh = (7, 2, 4)
    hd = C // nh
    scale = hd ** (-0.5)
    qkv = (x @ wqkv).reshape(B, H, W, 3, nh, hd)
    q = qkv[:, :, :, 0].clone()
    k = qkv[:, :, :, 1].clone()
    v = qkv[:, :, :, 2].clone()
    ih = torch.arange(H)
    iw = torch.arange(W)
    m = torch.arange(ks)
    sh = torch.clip(ih // dil - ks // 2, 0, H // dil - ks)
    sw = torch.clip(iw // dil - ks // 2, 0, W // dil - ks)
    kh = (sh[:, None] + m[None, :]) * dil + (ih % dil)[:, None]
    kw = (sw[:, None] + m[None, :]) * dil + (iw % dil)[:, None]
    rh = sh[:, None] + m[None, :] - (ih // dil)[:, None] + (ks - 1)
    rw = sw[:, None] + m[None, :] - (iw // dil)[:, None] + (ks - 1)
    ih4 = kh[:, :, None, None].clone()
    iw4 = kw[None, None, :, :].clone()
    kg = (lambda x, *d: x.permute(*d))(k[:, ih4, iw4, :, :], 0, 1, 3, 5, 2, 4, 6).reshape(B, H, W, nh, ks * ks, hd)
    vg = (lambda x, *d: x.permute(*d))(v[:, ih4, iw4, :, :], 0, 1, 3, 5, 2, 4, 6).reshape(B, H, W, nh, ks * ks, hd)
    bg = (lambda x, *d: x.permute(*d))(rpb[:, rh[:, :, None, None], rw[None, None, :, :]], 1, 3, 0, 2, 4).reshape(1, H, W, nh, ks * ks)
    logits = torch.einsum('bhwnd,bhwnkd->bhwnk', q, kg) * scale + bg
    attn = _softmax(logits, axis=-1)
    out = torch.einsum('bhwnk,bhwnkd->bhwnd', attn, vg).reshape(B, H, W, C)
    return out @ wo
```

```python
import re

TRANS = ("v_exp_f32", "v_rcp_f32", "v_log_f32", "v_rsq_f32", "v_sqrt_f32")

def regs_of(tok):
    tok = tok.strip()
    m = re.fullmatch(r"-?([vs])(\d+)", tok)
    if m: return {(m.group(1), int(m.group(2)))}
    m = re.fullmatch(r"-?([vs])\[(\d+):(\d+)\]", tok)
    if m: return {(m.group(1), i) for i in range(int(m.group(2)), int(m.group(3)) + 1)}
    if tok == "vcc": return {("s", "vcc")}
    if tok == "m0": return {("s", "m0")}
    if tok == "exec": return {("s", "exec")}
    return set()

class Ins:
    __slots__ = ("text", "op", "kind", "wr", "rd", "srcc", "ws", "opt")

class Asm:
    def __init__(self):
        self.out = []
        self.hist = []
        self.lds = []
        self.vm = []
        self.opt = None
        self.nnop = 0
    def raw(self, t):
        self.out.append(t)
    def label(self, name):
        self.out.append(name + ":")
    def comment(self, t):
        self.out.append("    ; " + t)
    def flush_hazards(self, n=0):
        if n: self.I(f"s_nop {n-1}")
        self.hist = []
    def begin_opt(self, name):
        self.opt = name; self.opt_start = len(self.hist)
    def end_opt(self):
        for i in self.hist[self.opt_start:]: i.ws = 0
        self.opt = None
    def reset_counters(self):
        self.lds = []; self.vm = []
    def parse(self, text):
        i = Ins(); i.text = text
        body = text.split(";")[0].strip()
        sp = body.split(None, 1)
        op = sp[0]; i.op = op
        rest = sp[1] if len(sp) > 1 else ""
        toks = [t.strip() for t in rest.split(",")]
        toks = [t.split()[0] if t else t for t in toks]
        R = [regs_of(t) for t in toks]
        i.wr = set(); i.rd = set(); i.srcc = set(); i.ws = 1
        is_lds_dma = op.startswith("buffer_load") and re.search(r"\blds\b", rest)
        if op.startswith("v_mfma"):
            i.kind = "mfma"; i.wr = R[0]; i.rd = R[1] | R[2] | R[3]; i.srcc = R[3]
        elif op.startswith("v_permlane") and "swap" in op:
            i.kind = "perm"; i.wr = R[0] | R[1]; i.rd = R[0] | R[1]
        elif op.startswith("v_cmp"):
            i.kind = "valu"; i.wr = R[0]; i.rd = set().union(*R[1:])
        elif op.startswith("v_readfirstlane") or op.startswith("v_readlane"):
            i.kind = "rdlane"; i.wr = R[0]; i.rd = set().union(*R[1:])
        elif op.startswith("v_"):
            i.kind = "trans" if op.replace("_e32", "").replace("_e64", "") in TRANS else "valu"
            i.wr = R[0]; i.rd = set().union(*R[1:]) if len(R) > 1 else set()
            if op.startswith("v_fmac"): i.rd |= R[0]
            if "dpp" in op: i.kind = "dpp"
        elif op.startswith("ds_read") or op.startswith("ds_bpermute"):
            i.kind = "dsr"; i.wr = R[0]; i.rd = set().union(*R[1:])
        elif op.startswith("ds_"):
            i.kind = "dsw"; i.rd = set().union(*R)
        elif is_lds_dma:
            i.kind = "dma"; i.rd = set().union(*R) | {("s", "m0")}
        elif op.startswith("buffer_load") or op.startswith("global_load"):
            i.kind = "vld"; i.wr = R[0]; i.rd = set().union(*R[1:])
        elif op.startswith("buffer_store") or op.startswith("global_store"):
            i.kind = "vst"; i.rd = set().union(*R); i.srcc = R[0] if ("x3" in op or "x4" in op) else set()
        elif op == "s_nop":
            i.kind = "nop"; i.ws = int(toks[0], 0) + 1
        elif op.startswith("s_"):
            i.kind = "salu"
            if op.startswith(("s_cmp", "s_cbranch", "s_branch", "s_waitcnt", "s_barrier", "s_setprio", "s_endpgm", "s_sleep")):
                i.rd = set().union(*R) if R else set()
            else:
                i.wr = R[0]; i.rd = set().union(*R[1:]) if len(R) > 1 else set()
        else:
            raise ValueError("unknown op " + text)
        return i
    def need(self, p, c):
        VAL = ("valu", "trans", "perm", "dpp", "rdlane")
        n = 0
        pv = {r for r in p.wr if r[0] == "v"}; ps = {r for r in p.wr if r[0] == "s"}
        if p.kind in VAL:
            if c.kind == "mfma" and pv & c.rd: n = max(n, 2)
            if c.kind in ("perm", "dpp") and pv & c.rd: n = max(n, 2)
            if c.kind == "rdlane" and pv & c.rd: n = max(n, 1)
            if p.kind == "trans" and c.kind in VAL and c.kind != "trans" and pv & c.rd: n = max(n, 1)
            if ps & c.rd:
                if c.kind in VAL: n = max(n, 2)
                if c.kind in ("dma", "vld", "vst"): n = max(n, 5)
                if c.kind == "salu": n = max(n, 1)
        if p.kind == "mfma":
            if c.kind == "mfma":
                ab = c.rd - c.srcc
                if p.wr & ab: n = max(n, 8)
                if p.wr & c.srcc and p.wr != c.srcc: n = max(n, 6)
            elif c.kind in VAL:
                if p.wr & (c.rd | c.wr): n = max(n, 8)
                if p.srcc & c.wr: n = max(n, 3)
            elif c.kind in ("dsr", "dsw", "vld", "vst", "dma"):
                if p.wr & (c.rd | c.wr): n = max(n, 8)
        if p.kind == "salu" and ("s", "m0") in p.wr and c.kind == "dma": n = max(n, 1)
        if p.kind == "vst" and p.srcc and p.srcc & c.wr: n = max(n, 2)
        return n
    def _wait(self, lst, touched, name, mx):
        idx = None
        for k in range(len(lst) - 1, -1, -1):
            if lst[k][0] & touched:
                idx = k; break
        if idx is None: return
        blk = lst[idx][1]
        n = sum(1 for (d, b) in lst[idx + 1:] if b is None or b == blk)
        n = min(n, mx)
        self._emit(self.parse(f"s_waitcnt {name}({n})"))
        if self.opt is None:
            del lst[: idx + 1]
        else:
            lst[:] = [e for k, e in enumerate(lst) if k > idx or e[1] != self.opt]
    def _emit(self, i):
        dist = 0; req = 0
        for p in reversed(self.hist):
            n = self.need(p, i)
            if n - dist > req: req = n - dist
            dist += p.ws
            if dist >= 10: break
        if req > 0:
            nop = self.parse(f"s_nop {req-1}")
            self.out.append("    " + nop.text); self.hist.append(nop); self.nnop += req
        self.out.append("    " + i.text)
        self.hist.append(i)
        if len(self.hist) > 200 and self.opt is None: self.hist = self.hist[-100:]
    def I(self, text):
        for line in text.strip().split("\n"):
            line = line.strip()
            if not line or line.startswith(";"): continue
            i = self.parse(line)
            touched = i.rd | i.wr
            self._wait(self.lds, touched, "lgkmcnt", 15)
            self._wait(self.vm, touched, "vmcnt", 63)
            self._emit(i)
            if i.kind == "dsr": self.lds.append((i.wr, self.opt))
            elif i.kind == "dsw": self.lds.append((set(), self.opt))
            elif i.kind == "vld": self.vm.append((i.wr, self.opt))
            elif i.kind in ("vst", "dma"): self.vm.append((set(), self.opt))
            elif i.op == "s_waitcnt":
                m = re.search(r"lgkmcnt\((\d+)\)", line)
                if m and int(m.group(1)) == 0 and self.opt is None: self.lds = []
                m = re.search(r"vmcnt\((\d+)\)", line)
                if m and self.opt is None:
                    n = int(m.group(1))
                    if n == 0: self.vm = []
                    elif all(b is None for _, b in self.vm) and len(self.vm) > n: self.vm = self.vm[len(self.vm) - n:]
    def text(self):
        return "\n".join(self.out) + "\n"

def vr(b, n=1):
    return f"v{b}" if n == 1 else f"v[{b}:{b+n-1}]"
```

```python
import sys, os
sys.path.insert(0, os.path.dirname(os.path.abspath(__file__)))
from asmlib import Asm, vr

KN = "standalone__neighborhood_dinat__vision_kernel"
QO_OFF, BIAS_OFF, FLAG_OFF, X_OFF, KV_OFF = 0, 18432, 22528, 23040, 99840
W_OFF = KV_OFF - 23296
RS = 86016
NEG_INF = "0xff800000"
MF = "v_mfma_f32_16x16x32_bf16"

class Opt:
    stamps = False
    xnt = False
    prefetch_code = False

def f32hex(x):
    import struct
    return "0x%08x" % struct.unpack("<I", struct.pack("<f", x))[0]

S_W = "s3"
SX, SWQ, SWO, SRP, SOUT = "s[16:19]", "s[20:23]", "s[24:27]", "s[28:31]", "s[32:35]"
S_MODE, S_FM, S_EDGE, S_C0M3, S_X0, S_XST, S_RS = "s36", "s37", "s38", "s39", "s40", "s41", "s42"
S_O0 = "s43"
S_M48, S_MK0, S_MK7, S_MHI = "s[44:45]", "s[46:47]", "s[48:49]", "s[50:51]"
S_H, S_C = "s52", "s53"
S_MA, S_MB = "s54", "s55"
S_QS = "s56"
S_PLO, S_PHI = "s57", "s58"
S_K1, S_K2 = "s59", "s60"
T0, T1, T2, T3, T4 = "s61", "s62", "s63", "s64", "s65"
S_ST = 70

class Gen:
    def __init__(self, opt):
        self.a = Asm(); self.o = opt; self.nst = 0
    def I(self, t): self.a.I(t)
    def stamp(self):
        if self.o.stamps:
            assert self.nst < 15
            self.I(f"s_memtime s[{S_ST+2*self.nst}:{S_ST+2*self.nst+1}]")
        self.nst += 1
    def barrier(self, vm=None):
        w = "s_waitcnt lgkmcnt(0)" if vm is None else f"s_waitcnt vmcnt({vm}) lgkmcnt(0)"
        self.I(w); self.I("s_barrier"); self.stamp()

    def start(self):
        a = self.a; I = self.I
        a.raw(f"""; DiNAT neighbourhood attention, fused qkv projection + attention + output projection
; @launch grid=(256,1,1) block=(768,1,1) lds=163840
.amdgcn_target "amdgcn-amd-amdhsa--gfx950"
.text
.globl {KN}
.p2align 8
.type {KN},@function
{KN}:""")
        if self.o.stamps: I("s_memtime s[68:69]")
        I(f"""
        s_cmp_ge_u32 s2, 256
        s_cbranch_scc1 L_end
        s_load_dwordx2 s[16:17], s[0:1], 0
        s_load_dwordx2 s[20:21], s[0:1], 8
        s_load_dwordx2 s[28:29], s[0:1], 24
        s_load_dwordx2 s[24:25], s[0:1], 16
        s_load_dwordx2 s[32:33], s[0:1], 32
        v_lshrrev_b32 v1, 6, v0
        v_and_b32 v0, 63, v0
        s_mov_b32 {S_MODE}, 0
        v_readfirstlane_b32 {S_W}, v1
        s_mov_b32 s18, 9633792
        s_mov_b32 s19, 0x20000
        s_mov_b32 s22, 55296
        s_mov_b32 s23, 0x20000
        s_mov_b32 s30, 1352
        s_mov_b32 s31, 0x20000
        s_mov_b32 s26, 18432
        s_mov_b32 s27, 0x20000
        s_mov_b32 s34, 9633792
        s_mov_b32 s35, 0x20000
        s_mov_b32 {S_RS}, {RS}
        s_bfe_u32 {T0}, s2, 0x20001
        s_lshr_b32 {T1}, s2, 7
        s_lshl1_add_u32 {T0}, {T0}, {T1}
        s_and_b32 {T1}, s2, 1
        s_bfe_u32 {T2}, s2, 0x20005
        s_lshl2_add_u32 {T1}, {T1}, {T2}
        s_mul_i32 {S_C0M3}, {T1}, 14
        s_sub_u32 {S_C0M3}, {S_C0M3}, 3
        s_bfe_u32 {T2}, s2, 0x10003
        s_mul_i32 {T2}, {T2}, 192
        s_bfe_u32 {T3}, s2, 0x10004
        s_mul_i32 {T3}, {T3}, 43008
        s_add_u32 {T2}, {T2}, {T3}
        s_mul_i32 {T3}, {T0}, 14
        s_sub_u32 {T4}, {T3}, 3
        s_cmp_eq_u32 {T0}, 0
        s_cselect_b32 {S_FM}, 3, 0
        s_cselect_b32 {T4}, 13, {T4}
        s_cselect_b32 {T3}, 12, {T3}
        s_mov_b32 {S_XST}, {4*RS}
        s_cselect_b32 {S_XST}, {(-4*RS) & 0xffffffff:#x}, {S_XST}
        s_cselect_b32 {S_EDGE}, 1, 0
        s_cmp_eq_u32 {T0}, 7
        s_cselect_b32 {S_EDGE}, 1, {S_EDGE}
        s_mul_i32 {S_X0}, {T4}, {S_RS}
        s_add_u32 {S_X0}, {S_X0}, {T2}
        s_mul_i32 {S_O0}, {T3}, {S_RS}
        s_add_u32 {S_O0}, {S_O0}, {T2}
        """)
        a.label("L_restart")
        I(f"""
        v_lshlrev_b32 v1, 4, v0
        s_lshl_b32 {S_K1}, {S_W}, 12
        s_lshl_b32 {S_K2}, {S_W}, 10
        s_add_u32 {S_K2}, {S_K2}, 49152
        s_cmp_lt_u32 {S_W}, 4
        s_cbranch_scc1 L_prod
        """)
    def w_dma(self):
        I = self.I
        I(f"s_add_u32 m0, {S_K1}, {W_OFF}")
        for n in range(4):
            I(f"buffer_load_dwordx4 v1, {SWQ}, {S_K1} offen offset:{1024*n} lds")
        I(f"s_add_u32 m0, {S_K2}, {W_OFF}")
        I(f"buffer_load_dwordx4 v1, {SWQ}, {S_K2} offen lds")

    KF, VF, BI, SS, OO, QQ = 8, 40, 72, 104, 136, 144
    KA, KB, VA0, VA1, VB0, VB1, QR, OW64, OW32, XVA, XVB, ACC, RC = range(148, 161)
    BC = 1
    TA = 161

    def x_dma(self, b, which):
        I = self.I
        nt = " nt" if self.o.xnt else ""
        for w in which:
            vo = self.XVA if w == 0 else self.XVB
            mb = S_MA if w == 0 else S_MB
            I(f"s_add_u32 m0, {mb}, {b*15360}")
            if b == 4:
                I(f"v_add_u32 v{vo}, {T0}, v{vo}")
                I(f"buffer_load_dwordx4 v{vo}, {SX}, 0 offen{nt} lds")
            else:
                I(f"buffer_load_dwordx4 v{vo}, {SX}, {T0} offen{nt} lds")
    def x_soff(self, b):
        if b == 0: self.I(f"s_mov_b32 {T0}, {S_X0}")
        else:
            self.I(f"s_mul_i32 {T0}, {S_XST}, {b}")
            self.I(f"s_add_u32 {T0}, {T0}, {S_X0}")

    def att_setup(self):
        I = self.I; t = self.TA
        I(f"""
        s_sub_u32 {T1}, {S_W}, 4
        s_add_u32 {T2}, {T1}, 8
        s_min_u32 {T2}, {T2}, 14
        s_lshl_b32 {T3}, {T1}, 6
        s_lshl_b32 {T4}, {T2}, 6
        """)
        for (sreg, vo) in ((T3, self.XVA), (T4, self.XVB)):
            I(f"""
            v_add_u32 v{t}, {sreg}, v0
            v_mul_u32_u24 v{t+1}, 0xaab, v{t}
            v_lshrrev_b32 v{t+1}, 15, v{t+1}
            v_mul_u32_u24 v{t+2}, 12, v{t+1}
            v_sub_u32 v{t}, v{t}, v{t+2}
            v_mul_u32_u24 v{t+2}, 0xcd, v{t+1}
            v_lshrrev_b32 v{t+3}, 2, v{t+1}
            v_lshrrev_b32 v{t+2}, 12, v{t+2}
            v_and_b32 v{t+3}, 2, v{t+3}
            v_mul_u32_u24 v{t+4}, 20, v{t+2}
            v_xor_b32 v{t}, v{t}, v{t+3}
            v_sub_u32 v{t+1}, v{t+1}, v{t+4}
            v_xor_b32 v{t+2}, {S_FM}, v{t+2}
            v_add_u32 v{t+1}, {S_C0M3}, v{t+1}
            v_max_i32 v{t+1}, 0, v{t+1}
            v_min_i32 v{t+1}, 111, v{t+1}
            v_mul_u32_u24 v{t+1}, 24, v{t+1}
            v_add_lshl_u32 v{t}, v{t}, v{t+1}, 4
            v_mad_u32_u24 v{vo}, v{t+2}, {S_RS}, v{t}
            """)
        I(f"""
        s_lshl_b32 {S_MA}, {T1}, 10
        s_add_u32 {S_MA}, {S_MA}, {X_OFF}
        s_lshl_b32 {S_MB}, {T2}, 10
        s_add_u32 {S_MB}, {S_MB}, {X_OFF}
        s_and_b32 {S_H}, {T1}, 3
        s_lshr_b32 {S_C}, {T1}, 2
        s_waitcnt lgkmcnt(0)
        """)
        self.x_soff(0); self.x_dma(0, (0, 1))
        self.x_soff(1); self.x_dma(1, (0,))
        self.w_dma()
        self.x_dma(1, (1,))
        G, Q = t + 5, t + 6
        I(f"""
        v_lshrrev_b32 v{G}, 4, v0
        v_and_b32 v{Q}, 15, v0
        s_lshl_b32 {T1}, {S_C}, 3
        v_add_u32 v{t}, {T1}, v{G}
        v_sub_u32 v{t+1}, 12, v{t}
        s_cmp_eq_u32 {S_FM}, 0
        s_cselect_b64 vcc, -1, 0
        s_movk_i32 {T2}, -104
        s_cselect_b32 {T2}, 104, {T2}
        s_mul_i32 {T3}, {S_H}, 338
        v_cndmask_b32 v{t+1}, v{t+1}, v{t}, vcc
        v_mul_i32_i24 v{t+1}, 26, v{t+1}
        v_lshl_add_u32 v{t+1}, v{Q}, 1, v{t+1}
        v_add_u32 v{t+1}, {T3}, v{t+1}
        v_add_u32 v{t+2}, {T2}, v{t+1}
        buffer_load_ushort v{self.SS}, v{t+1}, {SRP}, 0 offen
        buffer_load_ushort v{self.SS+1}, v{t+2}, {SRP}, 0 offen
        """)
        self.x_soff(2); self.x_dma(2, (0, 1))
        KA, KB = self.KA, self.KB
        I(f"""
        s_mul_i32 {T1}, {S_C}, 2800
        s_mul_i32 {T2}, {S_H}, 96
        s_add_u32 {T1}, {T1}, {T2}
        s_add_u32 {T1}, {T1}, {KV_OFF}
        s_movk_i32 {T4}, 400
        """)
        def keypx(vm, va, vb):
            I(f"""
            v_lshrrev_b32 v{t}, 3, v{vm}
            v_bfe_u32 v{t+1}, v{vm}, 2, 1
            v_and_b32 v{t+2}, 3, v{vm}
            v_xor_b32 v{t+1}, v{t+1}, v{t}
            v_mul_u32_u24 v{t}, 20, v{t}
            v_lshl_add_u32 v{va}, v{t+1}, 2, v{t+2}
            v_min_u32 v{t+2}, 2, v{t+2}
            v_mad_u32_u24 v{vb}, v{t+1}, 3, v{t+2}
            v_min_u32 v{vb}, 4, v{vb}
            v_add_u32 v{va}, v{va}, v{t}
            v_add3_u32 v{vb}, v{vb}, v{t}, 8
            """)
        keypx(Q, KA, KB)
        I(f"""
        v_lshl_add_u32 v{t+3}, v{G}, 4, {T1}
        v_mad_u32_u24 v{KA}, v{KA}, {T4}, v{t+3}
        v_mad_u32_u24 v{KB}, v{KB}, {T4}, v{t+3}
        v_lshrrev_b32 v{t+4}, 2, v0
        """)
        keypx(t + 4, self.VA0, self.VB0)
        I(f"""
        v_and_b32 v{t+4}, 3, v0
        v_lshl_add_u32 v{t+3}, v{t+4}, 3, {T1}
        v_add_u32 v{t+3}, 48, v{t+3}
        v_mad_u32_u24 v{self.VA0}, v{self.VA0}, {T4}, v{t+3}
        v_mad_u32_u24 v{self.VB0}, v{self.VB0}, {T4}, v{t+3}
        v_cmp_gt_u32 vcc, 2, v{t+4}
        v_mov_b32 v{t}, {KV_OFF+384}
        v_add_u32 v{self.VA1}, 32, v{self.VA0}
        v_add_u32 v{self.VB1}, 32, v{self.VB0}
        v_cndmask_b32 v{self.VA1}, v{t}, v{self.VA1}, vcc
        v_cndmask_b32 v{self.VB1}, v{t}, v{self.VB1}, vcc
        s_mul_i32 {T1}, {S_C}, 3072
        s_mul_i32 {T2}, {S_H}, 768
        s_add_u32 {T1}, {T1}, {T2}
        v_lshl_add_u32 v{t}, v{Q}, 4, {T1}
        v_lshl_add_u32 v{self.QR}, v{G}, 8, v{t}
        v_lshrrev_b32 v{t+1}, 1, v{G}
        v_and_b32 v{t+2}, 1, v{G}
        v_lshl_add_u32 v{t}, v{t+2}, 3, v{t}
        v_lshl_add_u32 v{self.OW64}, v{t+1}, 8, v{t}
        v_lshl_add_u32 v{self.OW32}, v{t+1}, 2, v{t}
        v_add_u32 v{self.OW32}, 512, v{self.OW32}
        """)
        I(f"""
        v_xor_b32 v{t+2}, v{t+2}, v{t+1}
        v_lshrrev_b32 v{t+3}, 3, v{Q}
        v_sub_u32 v{t+1}, v{t+1}, v{t+3}
        v_and_b32 v{t+3}, 7, v{Q}
        v_min_u32 v{t+3}, 6, v{t+3}
        s_lshl_b32 {T1}, {S_H}, 10
        s_add_u32 {T1}, {T1}, {BIAS_OFF + 64}
        v_lshl_add_u32 v{t+1}, v{t+1}, 6, {T1}
        s_mul_i32 {T2}, {S_C}, 7
        s_add_u32 {T2}, {T2}, {S_C0M3}
        v_add_u32 v{t}, {T2}, v{t+3}
        v_max_i32 v{t}, 0, v{t}
        v_min_i32 v{t}, 105, v{t}
        v_subrev_u32 v{t}, {T2}, v{t}
        v_lshlrev_b32 v{t+4}, 2, v{t+2}
        v_mad_u32_u24 v{t+2}, v{t+2}, 3, 8
        v_add_u32 v{G}, 52, v{t+1}
        """)
        tmp = Q
        for k in range(7):
            base = t + 4 if k < 4 else t + 2
            r = k if k < 4 else k - 4
            bc = self.BC + k
            I(f"""
            v_add_u32 v{bc}, {r}, v{base}
            v_sub_u32 v{tmp}, v{bc}, v{t}
            v_sub_u32 v{bc}, v{bc}, v{t+3}
            v_cmp_gt_u32 vcc, 7, v{tmp}
            v_add_u32 v{bc}, 3, v{bc}
            v_lshl_add_u32 v{bc}, v{bc}, 2, v{t+1}
            v_cndmask_b32 v{bc}, v{G}, v{bc}, vcc
            """)
        I(f"""
        s_mov_b32 s44, -1
        s_mov_b32 s45, 0xffff
        s_mov_b32 s46, 0xff00ff00
        s_mov_b32 s47, 0
        s_mov_b32 s48, 0
        s_mov_b32 s49, 0x00ff00ff
        s_mov_b32 s50, 0
        s_mov_b32 s51, -1
        v_mov_b32 v{self.ACC}, 0
        v_mov_b32 v{self.QQ}, 0
        v_mov_b32 v{self.QQ+1}, 0
        v_mov_b32 v{self.QQ+2}, 0
        v_mov_b32 v{self.QQ+3}, 0
        v_mov_b32 v{t}, {FLAG_OFF}
        ds_write_b32 v{t}, v{self.ACC}
        v_and_b32 v{t}, 1, v0
        v_mul_u32_u24 v{t}, 16000, v{t}
        v_add_u32 v{t}, {KV_OFF+384}, v{t}
        v_mov_b32 v{self.OO}, 0x3f803f80
        v_mov_b32 v{self.OO+1}, 0x3f803f80
        s_lshl_b32 {T1}, {S_H}, 10
        s_lshl_b32 {T2}, {S_C}, 9
        s_add_u32 {T1}, {T1}, {T2}
        s_add_u32 {T1}, {T1}, {BIAS_OFF}
        v_lshl_add_u32 v{t+1}, v0, 2, {T1}
        v_and_b32 v{t+2}, 15, v0
        v_mov_b32 v{t+3}, {NEG_INF}
        v_cmp_gt_u32 vcc, 13, v{t+2}
        """)
        self.barrier(vm=5)
        I(f"ds_write_b64 v{t}, v[{self.OO}:{self.OO+1}] offset:32000")
        for e in range(2):
            s = self.SS + e
            I(f"""
            v_lshlrev_b32 v{s}, 16, v{s}
            v_mul_f32 v{s}, {f32hex(1.4426950408889634)}, v{s}
            v_cndmask_b32 v{s}, v{t+3}, v{s}, vcc
            ds_write_b32 v{t+1}, v{s} offset:{256*e}
            """)
        self.barrier()
        I(f"ds_write_b64 v{t}, v[{self.OO}:{self.OO+1}]")

    def sl(self, rp): return (rp + 2) & 3
    def ld_k(self, rp):
        s = self.sl(rp)
        self.I(f"ds_read_b128 {vr(self.KF+8*s,4)}, v{self.KA} offset:{16000*s}")
        self.I(f"ds_read_b128 {vr(self.KF+8*s+4,4)}, v{self.KB} offset:{16000*s}")
    def ld_v(self, rp):
        s = self.sl(rp); b = self.VF + 8 * s
        for (d, ad) in ((0, self.VA0), (2, self.VB0), (4, self.VA1), (6, self.VB1)):
            self.I(f"ds_read_b64_tr_b16 {vr(b+d,2)}, v{ad} offset:{16000*s}")
    def ld_q(self, j):
        self.I(f"s_mov_b64 exec, {S_M48}")
        self.I(f"ds_read_b128 {vr(self.QQ,4)}, v{self.QR} offset:{QO_OFF + 6144*(j%3)}")
        self.I("s_mov_b64 exec, -1")
    def ld_bias(self, pos, rowoff):
        for k in range(7):
            self.I(f"ds_read_b32 v{self.BI+8*pos+k}, v{self.BC+k} offset:{64*rowoff}")
    def mask_bias(self, pos, mask):
        self.I(f"s_mov_b64 exec, {mask}")
        for k in range(7):
            self.I(f"v_mov_b32 v{self.BI+8*pos+k}, {NEG_INF}")
        self.I("s_mov_b64 exec, -1")
    def qk(self, j, rp, g):
        s = self.sl(rp); pos = rp - j
        return [f"{MF} {vr(self.SS+8*s+4*g,4)}, {vr(self.KF+8*s+4*g,4)}, {vr(self.QQ,4)}, {vr(self.BI+8*pos+4*g,4)}"]
    def exps(self, rp):
        b = self.SS + 8 * self.sl(rp)
        return [f"v_exp_f32 v{b+k}, v{b+k}" for k in range(7)]
    def cvts(self, rp):
        b = self.SS + 8 * self.sl(rp)
        return [f"v_cvt_pk_bf16_f32 v{b}, v{b}, v{b+1}", f"v_cvt_pk_bf16_f32 v{b+1}, v{b+2}, v{b+3}",
                f"v_cvt_pk_bf16_f32 v{b+2}, v{b+4}, v{b+5}", f"v_cvt_pk_bf16_f32 v{b+3}, v{b+6}, 0"]
    def pv(self, rp, first):
        s = self.sl(rp); r = []
        for d in range(2):
            o = vr(self.OO + 4 * d, 4)
            r.append(f"{MF} {o}, {vr(self.VF+8*s+4*d,4)}, {vr(self.SS+8*s,4)}, {'0' if first else o}")
        return r
    def norm(self, j):
        o = self.OO; rc = self.RC; off = QO_OFF + 6144 * ((j + 1) % 3)
        return [f"v_permlane32_swap_b32 v{o+4}, v{o+6}", f"v_permlane32_swap_b32 v{o+5}, v{o+7}",
                f"v_rcp_f32 v{rc}, v{o+6}",
                f"v_max3_f32 v{self.ACC}, v{self.ACC}, v{o+6}, v{rc}"] + \
               [f"v_mul_f32 v{o+k}, v{o+k}, v{rc}" for k in range(4)] + \
               [f"v_cvt_pk_bf16_f32 v{o}, v{o}, v{o+1}", f"v_cvt_pk_bf16_f32 v{o+1}, v{o+2}, v{o+3}",
                f"v_mul_f32 v{o+4}, v{o+4}, v{rc}", f"v_mul_f32 v{o+5}, v{o+5}, v{rc}",
                f"ds_write_b64 v{self.OW64}, v[{o}:{o+1}] offset:{off}",
                f"v_cvt_pk_bf16_f32 v{o+4}, v{o+4}, v{o+5}",
                f"ds_write_b32 v{self.OW32}, v{o+4} offset:{off}"]
    def E(self, lst):
        for x in lst: self.I(x)
    def mix(self, main, fill, every):
        fill = list(fill); n = 0
        for x in main:
            self.I(x); n += 1
            if fill and n % every == 0: self.I(fill.pop(0))
        self.E(fill)
    def opt_block(self, name, body):
        a = self.a
        self.I(f"s_cmp_eq_u32 {S_EDGE}, 0")
        self.I(f"s_cbranch_scc1 {name}")
        a.begin_opt(name)
        body()
        a.end_opt()
        a.label(name)
    def edge_fix(self, j, tag):
        if j == 5:
            self.opt_block(f"L_e5{tag}", lambda: (self.ld_bias(0, 2), self.mask_bias(3, S_MHI)))
        if j == 6:
            self.opt_block(f"L_e6{tag}", lambda: (self.ld_bias(3, 0), self.mask_bias(2, S_MHI)))
    def ld_new(self, rp, tag):
        if rp == 9:
            a = self.a
            self.I(f"s_cmp_lg_u32 {S_EDGE}, 0")
            self.I(f"s_cbranch_scc1 L_s9{tag}")
            a.begin_opt("s9" + tag)
            self.ld_k(rp); self.ld_v(rp)
            a.end_opt()
            a.label(f"L_s9{tag}")
        else:
            self.ld_k(rp); self.ld_v(rp)
    def att_dma(self, ph):
        if ph == -1:
            self.x_soff(3); self.x_dma(3, (0, 1)); return 2
        if ph == 1:
            self.x_soff(4); self.x_dma(4, (0, 1)); return 2
        if ph == 3: return 0
        return None
    def bias_init(self):
        for pos in range(4): self.ld_bias(pos, 2 + 2 * pos)
    def bias_mask_init(self):
        self.mask_bias(0, S_MK0); self.mask_bias(3, S_MK7)

    def att_fast(self):
        I = self.I; E = self.E
        self.ld_q(0); self.ld_k(0); self.ld_k(1)
        self.bias_init()
        self.ld_v(0); self.ld_v(1)
        self.bias_mask_init()
        E(self.qk(0, 0, 0) + self.qk(0, 0, 1) + self.qk(0, 1, 0) + self.qk(0, 1, 1))
        E(self.exps(0)); E(self.cvts(0))
        self.mix(self.exps(1), self.pv(0, True), 2)
        E(self.cvts(1))
        vm = self.att_dma(-1)
        E(self.pv(1, False))
        self.barrier(vm)
        pre = 0
        for j in range(7):
            if j == 0:
                self.ld_k(2); self.ld_k(3); self.ld_v(2); self.ld_v(3)
                E(self.qk(0, 2, 0) + self.qk(0, 2, 1) + self.qk(0, 3, 0) + self.qk(0, 3, 1))
                self.ld_q(1)
                E(self.exps(2)); E(self.cvts(2))
                self.mix(self.exps(3), self.pv(2, False), 2)
            else:
                new = j + 3
                self.ld_new(new, "f")
                E(self.cvts(j))
                self.mix(self.exps(j + 1), self.pv(j, True), 2)
                E(self.cvts(j + 1))
                self.mix(self.exps(j + 2), self.qk(j, new, 0) + self.qk(j, new, 1) + self.pv(j + 1, False), 1)
                if j < 6: self.ld_q(j + 1)
                E(self.cvts(j + 2))
                self.mix(self.exps(new), self.pv(j + 2, False), 2)
            new = j + 3
            if j < 6:
                self.edge_fix(j + 1, "f")
                nq = [self.qk(j + 1, r, g)[0] for r in (j + 1, j + 2, j + 3) for g in (0, 1)]
                self.mix(self.cvts(new), nq[:2], 2)
                E(self.pv(new, False))
                E(nq[2:4])
                vm = self.att_dma(j)
                ex = self.exps(j + 1)
                self.mix(ex[:4], nq[4:6], 2)
                self.mix(self.norm(j), ex[4:], 3)
            else:
                E(self.cvts(new)); E(self.pv(new, False))
                E(self.norm(j))
                vm = None
                self.att_flag()
            self.barrier(vm)

    def att_flag(self):
        t = self.TA
        self.I(f"""
        v_mov_b32 v{t}, {f32hex(2.0**60)}
        v_cmp_gt_f32 vcc, v{self.ACC}, v{t}
        v_mov_b32 v{t+1}, {FLAG_OFF}
        s_and_b64 exec, vcc, exec
        ds_write_b32 v{t+1}, v{t}
        s_mov_b64 exec, -1
        """)

    def att_slow(self):
        I = self.I; E = self.E; t = self.TA
        self.ld_q(0); self.ld_k(0); self.ld_k(1); self.bias_init(); self.ld_v(0); self.ld_v(1)
        self.bias_mask_init()
        I(f"""
        v_xor_b32 v{t+2}, 16, v0
        v_lshlrev_b32 v{t+2}, 2, v{t+2}
        v_xor_b32 v{t+3}, 32, v0
        v_lshlrev_b32 v{t+3}, 2, v{t+3}
        """)
        self.barrier(self.att_dma(-1))
        for j in range(7):
            if j == 0:
                self.ld_k(2); self.ld_v(2)
            self.ld_new(j + 3, "s")
            self.edge_fix(j, "s")
            I("s_waitcnt lgkmcnt(0)")
            for r in range(j, j + 4):
                E(self.qk(j, r, 0) + self.qk(j, r, 1))
            if j < 6: self.ld_q(j + 1)
            regs = [self.SS + 8 * s + k for s in range(4) for k in range(7)]
            I(f"v_max_f32 v{t}, v{regs[0]}, v{regs[1]}")
            for k in range(2, 28, 2):
                I(f"v_max3_f32 v{t}, v{t}, v{regs[k]}, v{regs[k+1]}")
            for ad in (t + 2, t + 3):
                I(f"ds_bpermute_b32 v{t+1}, v{ad}, v{t}")
                I(f"v_max_f32 v{t}, v{t}, v{t+1}")
            for r in regs: I(f"v_sub_f32 v{r}, v{r}, v{t}")
            for n, r in enumerate(range(j, j + 4)):
                E(self.exps(r)); E(self.cvts(r)); E(self.pv(r, n == 0))
            E(self.norm(j))
            self.barrier(self.att_dma(j))

    WKV, W2, PA, XR, PE = 8, 44, 116, 140, 156
    XA, KW4, KW2, JR, JW, CHK = 2, 3, 4, 5, 6, 7
    PT = 164

    def prod_setup(self):
        I = self.I; t = self.PA
        self.a.label("L_prod")
        self.a.flush_hazards(); self.a.reset_counters()
        I("s_waitcnt lgkmcnt(0)")
        self.w_dma()
        G, N = t, t + 1
        I(f"""
        v_lshrrev_b32 v{G}, 4, v0
        v_and_b32 v{N}, 15, v0
        v_lshrrev_b32 v{t+2}, 2, v{N}
        v_and_b32 v{t+3}, 2, v{t+2}
        v_xor_b32 v{t+3}, v{t+3}, v{G}
        v_mul_u32_u24 v{t+4}, 12, v{N}
        v_add_lshl_u32 v{self.XA}, v{t+3}, v{t+4}, 4
        v_add_u32 v{self.XA}, {X_OFF}, v{self.XA}
        s_mul_i32 {T1}, {S_W}, 96
        s_add_u32 {T1}, {T1}, {KV_OFF}
        v_mul_u32_u24 v{t+3}, 400, v{N}
        v_add_u32 v{t+3}, {T1}, v{t+3}
        v_lshl_add_u32 v{self.KW4}, v{G}, 4, v{t+3}
        v_lshl_add_u32 v{self.KW2}, v{G}, 3, v{t+3}
        v_add_u32 v{self.KW2}, 64, v{self.KW2}
        s_and_b32 {S_C}, {S_W}, 1
        v_lshl_add_u32 v{t+3}, v{G}, 3, v{t+2}
        v_mul_u32_u24 v{t+3}, 576, v{t+3}
        v_add_u32 v{t+3}, {W_OFF}, v{t+3}
        v_and_b32 v{t+5}, 3, v0
        s_mul_i32 {T1}, {S_W}, 48
        s_add_u32 {T1}, {T1}, 192
        v_lshl_add_u32 v{t+6}, v{t+5}, 4, {T1}
        v_cmp_eq_u32 vcc, 3, v{t+5}
        v_add_u32 v{t+7}, 144, v{t+6}
        v_lshl_add_u32 v{t+8}, v{t+5}, 3, {T1}
        v_cndmask_b32 v{t+6}, v{t+6}, v{t+7}, vcc
        v_add_u32 v{self.PT}, v{t+6}, v{t+3}
        v_add3_u32 v{self.PT+1}, v{t+8}, v{t+3}, 64
        v_add_u32 v{self.PT+1}, 144, v{self.PT+1}
        v_mul_u32_u24 v{t+5}, 48, v{t+5}
        v_add_u32 v{self.PT+2}, v{t+5}, v{t+3}
        s_mul_i32 {T1}, {S_C}, 3072
        v_lshl_add_u32 v{t+3}, v{N}, 4, {T1}
        s_cmp_ge_u32 {S_W}, 2
        s_cbranch_scc1 L_prodO
        """)
    def wkv_frags(self):
        for ks in range(3):
            for tl in range(3):
                for e in range(2):
                    ad = self.PT if tl < 2 else self.PT + 1
                    off = ks * 18432 + e * 2304 + (8 if tl == 1 else 0)
                    self.I(f"ds_read_b64_tr_b16 {vr(self.WKV + 12*ks + 4*tl + 2*e, 2)}, v{ad} offset:{off}")
    def wq_frags(self):
        r = []
        for ks in range(3):
            for tl in range(6):
                for e in range(2):
                    off = ks * 18432 + e * 2304 + 8 * tl
                    r.append(f"ds_read_b64_tr_b16 {vr(self.W2 + 24*ks + 4*tl + 2*e, 2)}, v{self.PT+2} offset:{off}")
        return r

    def run_jobs(self, jobs, fill=()):
        fill = list(fill)
        frags = [(n, ks) for n in range(len(jobs)) for ks in range(3)]
        def rd(i):
            if i < len(frags):
                n, ks = frags[i]; ad, off = jobs[n]["reads"][ks]
                self.I(f"ds_read_b128 {vr(self.XR + 4*(i&3), 4)}, v{ad} offset:{off}")
        for i in range(4): rd(i)
        pend = []
        for i, (n, ks) in enumerate(frags):
            if ks == 0 and jobs[n].get("drain"):
                self.E(pend); pend = []
                self.E(fill); fill = []
            for mi, m in enumerate(jobs[n]["mf"](ks, vr(self.XR + 4 * (i & 3), 4))):
                self.I(m)
                if fill: self.I(fill.pop(0))
                if pend and (ks, mi) >= (0, 2):
                    self.I(pend.pop(0))
                    if pend and pend[0].startswith("ds_"): self.I(pend.pop(0))
            rd(i + 4)
            if ks == 2:
                self.E(pend)
                pend = list(jobs[n]["post"])
        self.E(pend); self.E(fill)

    def kv_job(self, k, acc):
        a = self.PA + 12 * acc
        hi = k >= 15
        xo = (k - 15 if hi else k) * 3072
        wo = ((k + 5) % 10) * 6400
        def mf(ks, x):
            return [f"{MF} {vr(a+4*tl,4)}, {vr(self.WKV+12*ks+4*tl,4)}, {x}, {'0' if ks == 0 else vr(a+4*tl,4)}" for tl in range(3)]
        post = [f"v_cvt_pk_bf16_f32 v{a}, v{a}, v{a+1}", f"v_cvt_pk_bf16_f32 v{a+1}, v{a+2}, v{a+3}",
                f"v_cvt_pk_bf16_f32 v{a+2}, v{a+4}, v{a+5}", f"v_cvt_pk_bf16_f32 v{a+3}, v{a+6}, v{a+7}",
                f"ds_write_b128 v{self.KW4}, {vr(a,4)} offset:{wo}",
                f"v_cvt_pk_bf16_f32 v{a+8}, v{a+8}, v{a+9}", f"v_cvt_pk_bf16_f32 v{a+9}, v{a+10}, v{a+11}",
                f"ds_write_b64 v{self.KW2}, {vr(a+8,2)} offset:{wo}"]
        return dict(reads=[(self.XA, xo + 64 * ks) for ks in range(3)], mf=mf, post=post)
    def q_job(self, j):
        a = self.PA
        def mf(ks, x):
            return [f"{MF} {vr(a+4*tl,4)}, {vr(self.W2+24*ks+4*tl,4)}, {x}, {'0' if ks == 0 else vr(a+4*tl,4)}" for tl in range(6)]
        post = []
        for i in range(3):
            post += [f"v_mul_f32 v{a+8*i+k}, {S_QS}, v{a+8*i+k}" for k in range(8)]
            post += [f"v_cvt_pk_bf16_f32 v{a+4*i+k}, v{a+8*i+2*k}, v{a+8*i+2*k+1}" for k in range(4)]
            post += [f"ds_write_b128 v{self.JW}, {vr(a+4*i,4)} offset:{QO_OFF + 6144*(j%3) + 256*i}"]
        ad = self.JR if j % 2 == 0 else self.CHK
        return dict(reads=[(ad, 7680 * j + 64 * ks) for ks in range(3)], mf=mf, post=post, drain=True)
    def o_job(self, j):
        a = self.PA; e = self.PE
        def mf(ks, x):
            return [f"{MF} {vr(a+4*tl,4)}, {x}, {vr(self.W2+24*ks+4*tl,4)}, {'0' if ks == 0 else vr(a+4*tl,4)}" for tl in range(6)]
        post = [f"s_mul_i32 {T0}, {S_XST}, {j}", f"s_ashr_i32 {T0}, {T0}, 1", f"s_add_u32 {T0}, {T0}, {S_O0}"]
        post += [f"v_fma_f32 v{self.CHK}, v{a+r}, 0, v{self.CHK}" for r in range(4)]
        for r, d in enumerate((e, e + 4, a, a + 4)):
            post += [f"v_cvt_pk_bf16_f32 v{d+i}, v{a+8*i+r}, v{a+8*i+4+r}" for i in range(3)]
            if r == 3: post.append(f"s_mov_b64 exec, {S_M48}")
            post.append(f"buffer_store_dwordx3 {vr(d,3)}, v{self.JW}, {SOUT}, {T0} offen offset:{384*r}")
            if r == 3: post.append("s_mov_b64 exec, -1")
        return dict(reads=[(self.JR, QO_OFF + 6144 * ((j + 1) % 3) + 1024 * ks) for ks in range(3)], mf=mf, post=post, drain=True)
    def groups(self, ph):
        if ph == -2: return range(0, 5)
        if ph == -1: return range(5, 10)
        if ph > 5: return range(0)
        cum = lambda p: (5 * (p + 5) + 1) // 2
        return range(cum(ph - 1), cum(ph))
    def kv_jobs(self, ph):
        if ph == 2: self.I(f"v_add_u32 v{self.XA}, {15*3072}, v{self.XA}")
        return [self.kv_job(k, n & 1) for n, k in enumerate(self.groups(ph))]

    def prod_q(self):
        I = self.I; t = self.PA; G, N = t, t + 1
        I(f"""
        v_mul_u32_u24 v{t+5}, 768, v{G}
        v_add_u32 v{self.JW}, v{t+5}, v{t+3}
        v_lshrrev_b32 v{t+5}, 3, v{N}
        v_and_b32 v{t+6}, 7, v{N}
        v_min_u32 v{t+6}, 6, v{t+6}
        v_mad_u32_u24 v{t+5}, v{t+5}, 20, v{t+6}
        s_mul_i32 {T1}, {S_C}, 7
        s_add_u32 {T1}, {T1}, 63
        v_add_u32 v{t+5}, {T1}, v{t+5}
        v_lshrrev_b32 v{t+6}, 2, v{t+5}
        v_and_b32 v{t+6}, 2, v{t+6}
        v_xor_b32 v{t+6}, v{t+6}, v{G}
        v_mul_u32_u24 v{t+5}, 12, v{t+5}
        v_add_lshl_u32 v{self.JR}, v{t+5}, v{t+6}, 4
        v_add_u32 v{self.JR}, {X_OFF}, v{self.JR}
        v_xor_b32 v{self.CHK}, 32, v{self.JR}
        s_mov_b32 {S_QS}, {f32hex(24 ** -0.5 * 1.4426950408889634)}
        """)
        self.barrier(vm=0)
        self.wkv_frags()
        for ph in range(-2, 7):
            jobs = self.kv_jobs(ph)
            if ph + 2 <= 6: jobs.append(self.q_job(ph + 2))
            self.run_jobs(jobs, self.wq_frags() if ph == -2 else ())
            self.barrier()
        I("s_branch L_fin")

    def wo_loads(self):
        I = self.I
        for ks in range(3):
            so = ("0", S_K1, S_K2)[ks]; b = self.W2 + 24 * ks
            for j in range(6):
                I(f"buffer_load_dwordx3 {vr(b+4*j,3)}, v{self.PT+3}, {SWO}, {so} offen offset:{192*j}")
            for j in (6, 7):
                for c in range(3):
                    I(f"buffer_load_dword v{b+4*(2*c+j-6)+3}, v{self.PT+3}, {SWO}, {so} offen offset:{192*j+4*c}")
    def wo_repack(self):
        r = []; t0, t1 = self.PE, self.PE + 1
        for ks in range(3):
            b = self.W2 + 24 * ks
            P = lambda row, col: b + 4 * row + col
            def diag(x, y):
                return [f"v_perm_b32 v{t0}, v{y}, v{x}, {S_PHI}", f"v_perm_b32 v{x}, v{y}, v{x}, {S_PLO}", f"v_mov_b32 v{y}, v{t0}"]
            for c in range(3):
                r += diag(P(2 * c, c), P(2 * c + 1, c))
            for (u, v) in ((0, 1), (0, 2), (1, 2)):
                x0, x1, y0, y1 = P(2 * u, v), P(2 * u + 1, v), P(2 * v, u), P(2 * v + 1, u)
                r += [f"v_perm_b32 v{t0}, v{x1}, v{x0}, {S_PLO}", f"v_perm_b32 v{t1}, v{x1}, v{x0}, {S_PHI}",
                      f"v_perm_b32 v{x0}, v{y1}, v{y0}, {S_PLO}", f"v_perm_b32 v{x1}, v{y1}, v{y0}, {S_PHI}",
                      f"v_mov_b32 v{y0}, v{t0}", f"v_mov_b32 v{y1}, v{t1}"]
            for c in range(3):
                r += diag(P(2 * c, 3), P(2 * c + 1, 3))
        return r

    def prod_o(self):
        I = self.I; t = self.PA; G, N = t, t + 1
        self.a.label("L_prodO")
        self.a.flush_hazards(); self.a.reset_counters()
        I(f"""
        v_lshl_add_u32 v{self.JR}, v{G}, 8, v{t+3}
        v_mul_u32_u24 v{t+5}, 1536, v{G}
        v_add_u32 v{self.PT+3}, v{t+5}, v{t+4}
        v_lshrrev_b32 v{t+5}, 1, v{G}
        s_and_b32 {T1}, {S_FM}, 1
        v_xor_b32 v{t+5}, {T1}, v{t+5}
        v_mad_u32_u24 v{t+5}, v{t+5}, {S_RS}, v{t+4}
        v_and_b32 v{t+6}, 1, v{G}
        v_mul_u32_u24 v{t+6}, 1536, v{t+6}
        s_mul_i32 {T1}, {S_C}, 7
        s_add_u32 {T1}, {T1}, {S_C0M3}
        s_add_u32 {T1}, {T1}, 3
        s_mul_i32 {T1}, {T1}, 384
        v_add3_u32 v{self.JW}, v{t+5}, v{t+6}, {T1}
        v_mov_b32 v{self.CHK}, 0
        s_mov_b32 s44, 0xffff
        s_mov_b32 s45, 0xffff
        s_mov_b32 {S_PLO}, 0x05040100
        s_mov_b32 {S_PHI}, 0x07060302
        s_movk_i32 {S_K1}, 6144
        s_movk_i32 {S_K2}, 12288
        """)
        self.barrier(vm=0)
        self.wkv_frags()
        for ph in range(-2, 8):
            jobs = self.kv_jobs(ph)
            if ph >= 1: jobs.append(self.o_job(ph - 1))
            self.run_jobs(jobs)
            if ph == -2: self.wo_loads()
            if ph == 0: self.E(self.wo_repack())
            if ph < 7: self.barrier()
        I(f"""
        v_cmp_u_f32 vcc, v{self.CHK}, v{self.CHK}
        v_mov_b32 v{self.PT}, {FLAG_OFF}
        s_and_b64 exec, vcc, exec
        ds_write_b32 v{self.PT}, v{self.PT}
        s_mov_b64 exec, -1
        """)

    def finish(self):
        I = self.I; a = self.a
        a.label("L_fin")
        a.flush_hazards(); a.reset_counters()
        self.nst = 11
        self.barrier()
        I(f"""
        v_mov_b32 v1, {FLAG_OFF}
        ds_read_b32 v1, v1
        s_waitcnt lgkmcnt(0)
        v_readfirstlane_b32 {T0}, v1
        s_cmp_lg_u32 {S_MODE}, 0
        s_cselect_b32 {T0}, 0, {T0}
        s_cmp_eq_u32 {T0}, 0
        s_cbranch_scc1 L_done
        s_mov_b32 {S_MODE}, 1
        s_waitcnt vmcnt(0)
        s_barrier
        s_branch L_restart
        """)
        a.label("L_done")
        if self.o.stamps: self.dump_stamps()
        a.label("L_end")
        I("s_endpgm")

    def dump_stamps(self):
        I = self.I
        I(f"""
        s_waitcnt vmcnt(0)
        s_memtime s[{S_ST+24}:{S_ST+25}]
        s_load_dwordx2 s[4:5], s[0:1], 48
        s_mov_b32 s6, 0x100000
        s_mov_b32 s7, 0x20000
        s_mul_i32 {T0}, s2, 12
        s_add_u32 {T0}, {T0}, {S_W}
        s_lshl_b32 {T0}, {T0}, 6
        s_waitcnt lgkmcnt(0)
        """)
        for i in range(13):
            I(f"s_sub_u32 {T1}, s{S_ST+2*i}, s68\nv_mov_b32 v{8+i}, {T1}")
        I(f"""
        v_mov_b32 v21, s68
        v_mov_b32 v22, 0
        v_mov_b32 v23, 0
        v_mov_b32 v1, 0
        s_mov_b64 exec, 1
        buffer_store_dwordx4 v[8:11], v1, s[4:7], {T0} offen
        buffer_store_dwordx4 v[12:15], v1, s[4:7], {T0} offen offset:16
        buffer_store_dwordx4 v[16:19], v1, s[4:7], {T0} offen offset:32
        buffer_store_dwordx4 v[20:23], v1, s[4:7], {T0} offen offset:48
        """)

    def build(self):
        a = self.a; I = self.I
        self.start()
        self.nst = 0
        self.att_setup()
        I(f"s_cmp_lg_u32 {S_MODE}, 0")
        I("s_cbranch_scc1 L_slow")
        self.att_fast()
        I("s_branch L_fin")
        self.nst = 0
        self.prod_setup()
        self.prod_q()
        self.nst = 0
        self.prod_o()
        self.finish()
        a.label("L_slow")
        a.flush_hazards(); a.reset_counters()
        self.nst = 2
        self.att_slow()
        I("s_branch L_fin")
        a.raw(f""".section .rodata,"a"
.p2align 6
.amdhsa_kernel {KN}
  .amdhsa_next_free_vgpr 168
  .amdhsa_next_free_sgpr 102
  .amdhsa_accum_offset 168
  .amdhsa_group_segment_fixed_size 0
  .amdhsa_kernarg_size 56
  .amdhsa_user_sgpr_count 2
  .amdhsa_user_sgpr_kernarg_segment_ptr 1
  .amdhsa_system_sgpr_workgroup_id_x 1
.end_amdhsa_kernel""")
        return a.text()

if __name__ == "__main__":
    o = Opt()
    out = "standalone__neighborhood_dinat__vision.s"
    for arg in sys.argv[1:]:
        if "=" in arg:
            k, v = arg.split("=")
            if k == "out": out = v
            else: setattr(o, k, eval(v))
    g = Gen(o)
    open(out, "w").write(g.build())
    print("written", out, "nops", g.a.nnop)
```

```python
import sys, os
sys.path.insert(0, os.path.dirname(os.path.abspath(__file__)))
from asmlib import Asm, vr

KN = "standalone__neighborhood_dinat__vision_kernel"
QO_OFF, BIAS_OFF, FLAG_OFF, X_OFF, KV_OFF = 0, 18432, 22528, 23040, 99840
W_OFF = KV_OFF - 23296
RS = 86016
NEG_INF = "0xff800000"
MF = "v_mfma_f32_16x16x32_bf16"

class Opt:
    stamps = False
    xnt = False
    prio = (0,2,1)
    cluster = False
    b3ph = -1
    b4ph = 0
    b3av = 1
    b4av = 3
    wrot = True
    b1early = False
    prefetch_code = False
    stf = " nt"
    dbg = False

def f32hex(x):
    import struct
    return "0x%08x" % struct.unpack("<I", struct.pack("<f", x))[0]

S_W = "s3"
SX, SWQ, SWO, SRP, SOUT = "s[16:19]", "s[20:23]", "s[24:27]", "s[28:31]", "s[32:35]"
S_MODE, S_FM, S_EDGE, S_C0M3, S_X0, S_XST, S_RS = "s36", "s37", "s38", "s39", "s40", "s41", "s42"
S_O0 = "s43"
S_M48, S_MK0, S_MK7, S_MHI = "s[44:45]", "s[46:47]", "s[48:49]", "s[50:51]"
S_H, S_C = "s52", "s53"
S_MA, S_MB = "s54", "s55"
S_QS = "s56"
S_PLO, S_PHI = "s57", "s58"
S_K1, S_K2 = "s59", "s60"
T0, T1, T2, T3, T4 = "s61", "s62", "s63", "s64", "s65"
S_ST = 70

class Gen:
    def __init__(self, opt):
        self.a = Asm(); self.o = opt; self.nst = 0
    mfprio = False; in_mf = False
    def I(self, t):
        if self.mfprio:
            if t.startswith(MF) and not self.in_mf:
                self.a.I(f"s_setprio {self.o.prio[1]}"); self.in_mf = True
            elif t.startswith("v_") and not t.startswith(MF) and self.in_mf:
                self.a.I(f"s_setprio {self.o.prio[0]}"); self.in_mf = False
        self.a.I(t)
    def dstamp(self, mode):
        if self.o.stamps == mode and self.nst < 11:
            self.I(f"s_memtime s[{S_ST+2*self.nst}:{S_ST+2*self.nst+1}]")
            self.nst += 1
    def stamp(self):
        if self.o.stamps and self.o.stamps >= 3 and self.nst != 11: return
        if self.o.stamps:
            assert self.nst < 15
            self.I(f"s_memtime s[{S_ST+2*self.nst}:{S_ST+2*self.nst+1}]")
        self.nst += 1
    def barrier(self, vm=None):
        w = "s_waitcnt lgkmcnt(0)" if vm is None else f"s_waitcnt vmcnt({vm}) lgkmcnt(0)"
        self.I(w)
        if self.o.stamps == 2: self.stamp()
        self.I("s_barrier")
        if self.o.stamps != 2: self.stamp()
        self.dstamp(3); self.dstamp(4)

    def start(self):
        a = self.a; I = self.I
        a.raw(f"""; DiNAT neighbourhood attention, fused qkv projection + attention + output projection
; @launch grid=(256,1,1) block=(768,1,1) lds=163840
.amdgcn_target "amdgcn-amd-amdhsa--gfx950"
.text
.globl {KN}
.p2align 8
.type {KN},@function
{KN}:""")
        if self.o.stamps: I("s_memtime s[68:69]")
        if self.o.dbg: I("s_memrealtime s[66:67]")
        I(f"""
        s_cmp_ge_u32 s2, 256
        s_cbranch_scc1 L_end
        s_load_dwordx2 s[16:17], s[0:1], 0
        s_load_dwordx2 s[20:21], s[0:1], 8
        s_load_dwordx2 s[28:29], s[0:1], 24
        s_load_dwordx2 s[24:25], s[0:1], 16
        s_load_dwordx2 s[32:33], s[0:1], 32
        v_lshrrev_b32 v1, 6, v0
        v_and_b32 v0, 63, v0
        s_mov_b32 {S_MODE}, 0
        v_readfirstlane_b32 {S_W}, v1
        s_mov_b32 s18, 9633792
        s_mov_b32 s19, 0x20000
        s_mov_b32 s22, 55296
        s_mov_b32 s23, 0x20000
        s_mov_b32 s30, 1352
        s_mov_b32 s31, 0x20000
        s_mov_b32 s26, 18432
        s_mov_b32 s27, 0x20000
        s_mov_b32 s34, 9633792
        s_mov_b32 s35, 0x20000
        s_mov_b32 {S_RS}, {RS}
        s_bfe_u32 {T0}, s2, 0x20001
        s_lshr_b32 {T1}, s2, 7
        s_lshl1_add_u32 {T0}, {T0}, {T1}
        s_and_b32 {T1}, s2, 1
        s_bfe_u32 {T2}, s2, 0x20005
        s_lshl2_add_u32 {T1}, {T1}, {T2}
        s_mul_i32 {S_C0M3}, {T1}, 14
        s_sub_u32 {S_C0M3}, {S_C0M3}, 3
        s_bfe_u32 {T2}, s2, 0x10003
        s_mul_i32 {T2}, {T2}, 192
        s_bfe_u32 {T3}, s2, 0x10004
        s_mul_i32 {T3}, {T3}, 43008
        s_add_u32 {T2}, {T2}, {T3}
        s_mul_i32 {T3}, {T0}, 14
        s_sub_u32 {T4}, {T3}, 3
        s_cmp_eq_u32 {T0}, 0
        s_cselect_b32 {S_FM}, 3, 0
        s_cselect_b32 {T4}, 13, {T4}
        s_cselect_b32 {T3}, 12, {T3}
        s_mov_b32 {S_XST}, {4*RS}
        s_cselect_b32 {S_XST}, {(-4*RS) & 0xffffffff:#x}, {S_XST}
        s_cselect_b32 {S_EDGE}, 1, 0
        s_cmp_eq_u32 {T0}, 7
        s_cselect_b32 {S_EDGE}, 1, {S_EDGE}
        s_mul_i32 {S_X0}, {T4}, {S_RS}
        s_add_u32 {S_X0}, {S_X0}, {T2}
        s_mul_i32 {S_O0}, {T3}, {S_RS}
        s_add_u32 {S_O0}, {S_O0}, {T2}
        """)
        a.label("L_restart")
        I(f"""
        s_cmp_lt_u32 {S_W}, 4
        s_cbranch_scc1 L_prod
        """)
    KF, VF, BI, SS, OO, QQ = 8, 40, 72, 104, 136, 144
    KA, KB, VA0, VA1, VB0, VB1, QR, OW64, OW32, XVA, XVB, ACC, RC = range(148, 161)
    BC = 1
    TA = 161
    Q2 = 164
    def qreg(self, j): return self.QQ if j % 2 == 0 else self.Q2

    def x_dma(self, b, which):
        I = self.I
        nt = " nt" if self.o.xnt else ""
        for w in which:
            vo = self.XVA if w == 0 else self.XVB
            mb = S_MA if w == 0 else S_MB
            I(f"s_add_u32 m0, {mb}, {b*15360}")
            if b == 4:
                I(f"v_add_u32 v{vo}, {T0}, v{vo}")
                I(f"buffer_load_dwordx4 v{vo}, {SX}, 0 offen{nt} lds")
            else:
                I(f"buffer_load_dwordx4 v{vo}, {SX}, {T0} offen{nt} lds")
    def x_soff(self, b):
        if b == 0: self.I(f"s_mov_b32 {T0}, {S_X0}")
        else:
            self.I(f"s_mul_i32 {T0}, {S_XST}, {b}")
            self.I(f"s_add_u32 {T0}, {T0}, {S_X0}")

    def att_setup(self):
        I = self.I; t = self.TA
        I(f"""
        s_sub_u32 {T1}, {S_W}, 4
        s_add_u32 {T2}, {T1}, 8
        s_min_u32 {T2}, {T2}, 14
        s_lshl_b32 {T3}, {T1}, 6
        s_lshl_b32 {T4}, {T2}, 6
        """)
        for (sreg, vo) in ((T3, self.XVA), (T4, self.XVB)):
            I(f"""
            v_add_u32 v{t}, {sreg}, v0
            v_mul_u32_u24 v{t+1}, 0xaab, v{t}
            v_lshrrev_b32 v{t+1}, 15, v{t+1}
            v_mul_u32_u24 v{t+2}, 12, v{t+1}
            v_sub_u32 v{t}, v{t}, v{t+2}
            v_mul_u32_u24 v{t+2}, 0xcd, v{t+1}
            v_lshrrev_b32 v{t+3}, 2, v{t+1}
            v_lshrrev_b32 v{t+2}, 12, v{t+2}
            v_and_b32 v{t+3}, 2, v{t+3}
            v_mul_u32_u24 v{t+4}, 20, v{t+2}
            v_xor_b32 v{t}, v{t}, v{t+3}
            v_sub_u32 v{t+1}, v{t+1}, v{t+4}
            v_xor_b32 v{t+2}, {S_FM}, v{t+2}
            v_add_u32 v{t+1}, {S_C0M3}, v{t+1}
            v_max_i32 v{t+1}, 0, v{t+1}
            v_min_i32 v{t+1}, 111, v{t+1}
            v_mul_u32_u24 v{t+1}, 24, v{t+1}
            v_add_lshl_u32 v{t}, v{t}, v{t+1}, 4
            v_mad_u32_u24 v{vo}, v{t+2}, {S_RS}, v{t}
            """)
        I(f"""
        s_lshl_b32 {S_MA}, {T1}, 10
        s_add_u32 {S_MA}, {S_MA}, {X_OFF}
        s_lshl_b32 {S_MB}, {T2}, 10
        s_add_u32 {S_MB}, {S_MB}, {X_OFF}
        s_and_b32 {S_H}, {T1}, 3
        s_lshr_b32 {S_C}, {T1}, 2
        s_waitcnt lgkmcnt(0)
        """)
        self.x_soff(0); self.x_dma(0, (0, 1))
        self.x_soff(1); self.x_dma(1, (0,))
        if self.o.b1early: self.x_dma(1, (1,))
        G, Q = t + 5, t + 6
        I(f"""
        v_lshrrev_b32 v{G}, 4, v0
        v_and_b32 v{Q}, 15, v0
        s_lshl_b32 {T1}, {S_C}, 3
        v_add_u32 v{t}, {T1}, v{G}
        v_sub_u32 v{t+1}, 12, v{t}
        s_cmp_eq_u32 {S_FM}, 0
        s_cselect_b64 vcc, -1, 0
        s_movk_i32 {T2}, -104
        s_cselect_b32 {T2}, 104, {T2}
        s_mul_i32 {T3}, {S_H}, 338
        v_cndmask_b32 v{t+1}, v{t+1}, v{t}, vcc
        v_mul_i32_i24 v{t+1}, 26, v{t+1}
        v_lshl_add_u32 v{t+1}, v{Q}, 1, v{t+1}
        v_add_u32 v{self.SS}, {T3}, v{t+1}
        v_add_u32 v{self.SS+1}, {T2}, v{self.SS}
        buffer_load_ushort v{self.SS}, v{self.SS}, {SRP}, 0 offen
        buffer_load_ushort v{self.SS+1}, v{self.SS+1}, {SRP}, 0 offen
        """)
        KA, KB = self.KA, self.KB
        I(f"""
        s_mul_i32 {T1}, {S_C}, 2800
        s_mul_i32 {T2}, {S_H}, 96
        s_add_u32 {T1}, {T1}, {T2}
        s_add_u32 {T1}, {T1}, {KV_OFF}
        s_movk_i32 {T4}, 400
        """)
        def keypx(vm, va, vb):
            I(f"""
            v_lshrrev_b32 v{t}, 3, v{vm}
            v_bfe_u32 v{t+1}, v{vm}, 2, 1
            v_and_b32 v{t+2}, 3, v{vm}
            v_xor_b32 v{t+1}, v{t+1}, v{t}
            v_mul_u32_u24 v{t}, 20, v{t}
            v_lshl_add_u32 v{va}, v{t+1}, 2, v{t+2}
            v_min_u32 v{t+2}, 2, v{t+2}
            v_mad_u32_u24 v{vb}, v{t+1}, 3, v{t+2}
            v_min_u32 v{vb}, 4, v{vb}
            v_add_u32 v{va}, v{va}, v{t}
            v_add3_u32 v{vb}, v{vb}, v{t}, 8
            """)
        keypx(Q, KA, KB)
        I(f"""
        v_lshl_add_u32 v{t+3}, v{G}, 4, {T1}
        v_mad_u32_u24 v{KA}, v{KA}, {T4}, v{t+3}
        v_mad_u32_u24 v{KB}, v{KB}, {T4}, v{t+3}
        v_lshrrev_b32 v{t+4}, 2, v0
        """)
        keypx(t + 4, self.VA0, self.VB0)
        I(f"""
        v_and_b32 v{t+4}, 3, v0
        v_lshl_add_u32 v{t+3}, v{t+4}, 3, {T1}
        v_add_u32 v{t+3}, 48, v{t+3}
        v_mad_u32_u24 v{self.VA0}, v{self.VA0}, {T4}, v{t+3}
        v_mad_u32_u24 v{self.VB0}, v{self.VB0}, {T4}, v{t+3}
        v_cmp_gt_u32 vcc, 2, v{t+4}
        v_mov_b32 v{t}, {KV_OFF+384}
        v_add_u32 v{self.VA1}, 32, v{self.VA0}
        v_add_u32 v{self.VB1}, 32, v{self.VB0}
        v_cndmask_b32 v{self.VA1}, v{t}, v{self.VA1}, vcc
        v_cndmask_b32 v{self.VB1}, v{t}, v{self.VB1}, vcc
        s_mul_i32 {T1}, {S_C}, 3072
        s_mul_i32 {T2}, {S_H}, 768
        s_add_u32 {T1}, {T1}, {T2}
        v_lshl_add_u32 v{t}, v{Q}, 4, {T1}
        v_lshl_add_u32 v{self.QR}, v{G}, 8, v{t}
        v_lshrrev_b32 v{t+1}, 1, v{G}
        v_and_b32 v{t+2}, 1, v{G}
        v_lshl_add_u32 v{t}, v{t+2}, 3, v{t}
        v_lshl_add_u32 v{self.OW64}, v{t+1}, 8, v{t}
        v_lshl_add_u32 v{self.OW32}, v{t+1}, 2, v{t}
        v_add_u32 v{self.OW32}, 512, v{self.OW32}
        """)
        I(f"""
        v_xor_b32 v{t+2}, v{t+2}, v{t+1}
        v_lshrrev_b32 v{t+3}, 3, v{Q}
        v_sub_u32 v{t+1}, v{t+1}, v{t+3}
        v_and_b32 v{t+3}, 7, v{Q}
        v_min_u32 v{t+3}, 6, v{t+3}
        s_lshl_b32 {T1}, {S_H}, 10
        s_add_u32 {T1}, {T1}, {BIAS_OFF + 64}
        v_lshl_add_u32 v{t+1}, v{t+1}, 6, {T1}
        s_mul_i32 {T2}, {S_C}, 7
        s_add_u32 {T2}, {T2}, {S_C0M3}
        v_add_u32 v{t}, {T2}, v{t+3}
        v_max_i32 v{t}, 0, v{t}
        v_min_i32 v{t}, 105, v{t}
        v_subrev_u32 v{t}, {T2}, v{t}
        v_lshlrev_b32 v{t+4}, 2, v{t+2}
        v_mad_u32_u24 v{t+2}, v{t+2}, 3, 8
        v_add_u32 v{G}, 52, v{t+1}
        """)
        tmp = Q
        for k in range(7):
            base = t + 4 if k < 4 else t + 2
            r = k if k < 4 else k - 4
            bc = self.BC + k
            I(f"""
            v_add_u32 v{bc}, {r}, v{base}
            v_sub_u32 v{tmp}, v{bc}, v{t}
            v_sub_u32 v{bc}, v{bc}, v{t+3}
            v_cmp_gt_u32 vcc, 7, v{tmp}
            v_add_u32 v{bc}, 3, v{bc}
            v_lshl_add_u32 v{bc}, v{bc}, 2, v{t+1}
            v_cndmask_b32 v{bc}, v{G}, v{bc}, vcc
            """)
        I(f"""
        s_mov_b32 s44, -1
        s_mov_b32 s45, 0xffff
        s_mov_b32 s46, 0xff00ff00
        s_mov_b32 s47, 0
        s_mov_b32 s48, 0
        s_mov_b32 s49, 0x00ff00ff
        s_mov_b32 s50, 0
        s_mov_b32 s51, -1
        v_mov_b32 v{self.ACC}, 0
        v_mov_b32 v{self.QQ}, 0
        v_mov_b32 v{self.QQ+1}, 0
        v_mov_b32 v{self.QQ+2}, 0
        v_mov_b32 v{self.QQ+3}, 0
        v_mov_b32 v{self.Q2}, 0
        v_mov_b32 v{self.Q2+1}, 0
        v_mov_b32 v{self.Q2+2}, 0
        v_mov_b32 v{self.Q2+3}, 0
        v_mov_b32 v{t}, {FLAG_OFF}
        ds_write_b32 v{t}, v{self.ACC}
        v_and_b32 v{t}, 3, v0
        v_mul_u32_u24 v{t}, 16000, v{t}
        v_add_u32 v{t}, {KV_OFF+384}, v{t}
        v_mov_b32 v{self.OO}, 0x3f803f80
        v_mov_b32 v{self.OO+1}, 0x3f803f80
        s_lshl_b32 {T1}, {S_H}, 10
        s_lshl_b32 {T2}, {S_C}, 9
        s_add_u32 {T1}, {T1}, {T2}
        s_add_u32 {T1}, {T1}, {BIAS_OFF}
        v_lshl_add_u32 v{t+1}, v0, 2, {T1}
        v_and_b32 v{t+2}, 15, v0
        v_cmp_gt_u32 vcc, 13, v{t+2}
        v_mov_b32 v{t+2}, {NEG_INF}
        """)
        I("s_barrier")
        self.dstamp(4)
        if not self.o.b1early: self.x_dma(1, (1,))
        self.x_soff(2); self.x_dma(2, (0, 1))
        self.dstamp(4)
        for e in range(2):
            s = self.SS + e
            I(f"""
            v_lshlrev_b32 v{s}, 16, v{s}
            v_mul_f32 v{s}, {f32hex(1.4426950408889634)}, v{s}
            v_cndmask_b32 v{s}, v{t+2}, v{s}, vcc
            ds_write_b32 v{t+1}, v{s} offset:{256*e}
            """)
        self.dstamp(4)
        self.barrier()
        I(f"ds_write_b64 v{t}, v[{self.OO}:{self.OO+1}]")
        self.bias_init()
        self.att_dma(-2)
        self.bias_mask_init()
        self.barrier(vm=2 + 2 * (self.o.b3ph <= -2))

    def sl(self, rp): return (rp + 2) & 3
    def ld_k(self, rp):
        s = self.sl(rp)
        self.I(f"ds_read_b128 {vr(self.KF+8*s,4)}, v{self.KA} offset:{16000*s}")
        self.I(f"ds_read_b128 {vr(self.KF+8*s+4,4)}, v{self.KB} offset:{16000*s}")
    def ld_v(self, rp):
        s = self.sl(rp); b = self.VF + 8 * s
        for (d, ad) in ((0, self.VA0), (2, self.VB0), (4, self.VA1), (6, self.VB1)):
            self.I(f"ds_read_b64_tr_b16 {vr(b+d,2)}, v{ad} offset:{16000*s}")
    def ld_q(self, j):
        self.I(f"s_mov_b64 exec, {S_M48}")
        self.I(f"ds_read_b128 {vr(self.qreg(j),4)}, v{self.QR} offset:{QO_OFF + 6144*(j%3)}")
        self.I("s_mov_b64 exec, -1")
    def ld_bias(self, pos, rowoff):
        for k in range(7):
            self.I(f"ds_read_b32 v{self.BI+8*pos+k}, v{self.BC+k} offset:{64*rowoff}")
    def mask_bias(self, pos, mask):
        self.I(f"s_mov_b64 exec, {mask}")
        for k in range(7):
            self.I(f"v_mov_b32 v{self.BI+8*pos+k}, {NEG_INF}")
        self.I("s_mov_b64 exec, -1")
    def qk(self, j, rp, g):
        s = self.sl(rp); pos = rp - j
        return [f"{MF} {vr(self.SS+8*s+4*g,4)}, {vr(self.KF+8*s+4*g,4)}, {vr(self.qreg(j),4)}, {vr(self.BI+8*pos+4*g,4)}"]
    def exps(self, rp):
        b = self.SS + 8 * self.sl(rp)
        return [f"v_exp_f32 v{b+k}, v{b+k}" for k in range(7)]
    def cvts(self, rp):
        b = self.SS + 8 * self.sl(rp)
        return [f"v_cvt_pk_bf16_f32 v{b}, v{b}, v{b+1}", f"v_cvt_pk_bf16_f32 v{b+1}, v{b+2}, v{b+3}",
                f"v_cvt_pk_bf16_f32 v{b+2}, v{b+4}, v{b+5}", f"v_cvt_pk_bf16_f32 v{b+3}, v{b+6}, 0"]
    def pv(self, rp, first):
        s = self.sl(rp); r = []
        for d in range(2):
            o = vr(self.OO + 4 * d, 4)
            r.append(f"{MF} {o}, {vr(self.VF+8*s+4*d,4)}, {vr(self.SS+8*s,4)}, {'0' if first else o}")
        return r
    def norm(self, j):
        o = self.OO; rc = self.RC; off = QO_OFF + 6144 * ((j + 1) % 3)
        return [f"v_permlane32_swap_b32 v{o+4}, v{o+6}", f"v_permlane32_swap_b32 v{o+5}, v{o+7}",
                f"v_rcp_f32 v{rc}, v{o+6}",
                f"v_max3_f32 v{self.ACC}, v{self.ACC}, v{o+6}, v{rc}"] + \
               [f"v_mul_f32 v{o+k}, v{o+k}, v{rc}" for k in range(4)] + \
               [f"v_cvt_pk_bf16_f32 v{o}, v{o}, v{o+1}", f"v_cvt_pk_bf16_f32 v{o+1}, v{o+2}, v{o+3}",
                f"v_mul_f32 v{o+4}, v{o+4}, v{rc}", f"v_mul_f32 v{o+5}, v{o+5}, v{rc}",
                f"ds_write_b64 v{self.OW64}, v[{o}:{o+1}] offset:{off}",
                f"v_cvt_pk_bf16_f32 v{o+4}, v{o+4}, v{o+5}",
                f"ds_write_b32 v{self.OW32}, v{o+4} offset:{off}"]
    def E(self, lst):
        for x in lst: self.I(x)
    def mix(self, main, fill, every):
        fill = list(fill); n = 0
        if self.o.cluster and fill and fill[0].startswith(MF):
            self.E(main[:2]); self.E(fill); self.E(main[2:]); return
        for x in main:
            self.I(x); n += 1
            if fill and n % every == 0: self.I(fill.pop(0))
        self.E(fill)
    def opt_block(self, name, body):
        a = self.a
        self.I(f"s_cmp_eq_u32 {S_EDGE}, 0")
        self.I(f"s_cbranch_scc1 {name}")
        a.begin_opt(name)
        body()
        a.end_opt()
        a.label(name)
    def edge_fix(self, j, tag):
        if j == 5:
            self.opt_block(f"L_e5{tag}", lambda: (self.ld_bias(0, 2), self.mask_bias(3, S_MHI)))
        if j == 6:
            self.opt_block(f"L_e6{tag}", lambda: (self.ld_bias(3, 0), self.mask_bias(2, S_MHI)))
    def ld_new(self, rp, tag):
        if rp == 9:
            a = self.a
            self.I(f"s_cmp_lg_u32 {S_EDGE}, 0")
            self.I(f"s_cbranch_scc1 L_s9{tag}")
            a.begin_opt("s9" + tag)
            self.ld_k(rp); self.ld_v(rp)
            a.end_opt()
            a.label(f"L_s9{tag}")
        else:
            self.ld_k(rp); self.ld_v(rp)
    def att_dma(self, ph):
        if ph == self.o.b3ph:
            self.x_soff(3); self.x_dma(3, (0, 1))
        if ph == self.o.b4ph:
            self.x_soff(4); self.x_dma(4, (0, 1))
        if ph == -1: return 2 * (self.o.b3ph <= ph) + 2 * (self.o.b4ph <= ph)
        if ph == self.o.b3av - 1: return 2 * (self.o.b4ph <= ph)
        if ph == self.o.b4av - 1: return 0
        return None
    def bias_init(self):
        for pos in range(4): self.ld_bias(pos, 2 + 2 * pos)
    def bias_mask_init(self):
        self.mask_bias(0, S_MK0); self.mask_bias(3, S_MK7)

    def att_fast(self):
        I = self.I; E = self.E
        self.ld_q(0); self.ld_k(0); self.ld_k(1)
        self.ld_v(0); self.ld_v(1)
        E(self.qk(0, 0, 0) + self.qk(0, 0, 1) + self.qk(0, 1, 0) + self.qk(0, 1, 1))
        E(self.exps(0)); E(self.cvts(0))
        self.mix(self.exps(1), self.pv(0, True), 2)
        vm = self.att_dma(-1)
        self.barrier(vm)
        for j in range(7):
            b, c, d = j + 1, j + 2, j + 3
            last = j == 6
            nq = lambda r: [] if last else self.qk(j + 1, r, 0) + self.qk(j + 1, r, 1)
            if j == 0:
                self.ld_k(2); self.ld_k(3); self.ld_q(1); self.ld_v(2); self.ld_v(3)
                E(self.cvts(1) + self.pv(1, False))
                E(self.qk(0, 2, 0) + self.qk(0, 2, 1) + self.qk(0, 3, 0) + self.qk(0, 3, 1) + nq(b))
                E(self.exps(c))
            else:
                self.ld_new(d, "f")
                if not last: self.ld_q(j + 1)
                E(self.cvts(b))
                ex = self.exps(c)
                self.mix(ex[:4], self.pv(b, False), 2)
                self.mix(ex[4:], self.qk(j, d, 0) + self.qk(j, d, 1), 2)
            if not last: self.edge_fix(j + 1, "f")
            self.mix(self.cvts(c), nq(b) if j else [], 2)
            ex = self.exps(d)
            self.mix(ex[:4], self.pv(c, False), 2)
            self.mix(ex[4:], nq(c), 2)
            E(self.cvts(d))
            vm = self.att_dma(j)
            if not last:
                ex = self.exps(b)
                self.mix(ex[:4], self.pv(d, False) + nq(d), 1)
                E(ex[4:])
                self.mix(self.norm(j), self.cvts(b), 3)
                self.mix(self.exps(c), self.pv(b, True), 2)
            else:
                E(self.pv(d, False))
                E(self.norm(j))
                self.att_flag()
            self.barrier(vm)

    def att_flag(self):
        t = self.TA
        self.I(f"""
        v_mov_b32 v{t}, {f32hex(2.0**60)}
        v_cmp_gt_f32 vcc, v{self.ACC}, v{t}
        v_mov_b32 v{t+1}, {FLAG_OFF}
        s_and_b64 exec, vcc, exec
        ds_write_b32 v{t+1}, v{t}
        s_mov_b64 exec, -1
        """)

    def att_slow(self):
        I = self.I; E = self.E; t = self.TA
        self.ld_q(0); self.ld_k(0); self.ld_k(1); self.ld_v(0); self.ld_v(1)
        I(f"""
        v_xor_b32 v{t+2}, 16, v0
        v_lshlrev_b32 v{t+2}, 2, v{t+2}
        """)
        self.barrier(self.att_dma(-1))
        for j in range(7):
            if j == 0:
                self.ld_k(2); self.ld_v(2)
            self.ld_new(j + 3, "s")
            self.edge_fix(j, "s")
            I("s_waitcnt lgkmcnt(0)")
            for r in range(j, j + 4):
                E(self.qk(j, r, 0) + self.qk(j, r, 1))
            if j < 6: self.ld_q(j + 1)
            regs = [self.SS + 8 * s + k for s in range(4) for k in range(7)]
            I(f"v_max_f32 v{t}, v{regs[0]}, v{regs[1]}")
            for k in range(2, 28, 2):
                I(f"v_max3_f32 v{t}, v{t}, v{regs[k]}, v{regs[k+1]}")
            for k in range(2):
                I(f"ds_bpermute_b32 v{t+1}, v{t+2}, v{t}")
                I(f"v_xor_b32 v{t+2}, 192, v{t+2}")
                I(f"v_max_f32 v{t}, v{t}, v{t+1}")
            for r in regs: I(f"v_sub_f32 v{r}, v{r}, v{t}")
            for n, r in enumerate(range(j, j + 4)):
                E(self.exps(r)); E(self.cvts(r)); E(self.pv(r, n == 0))
            E(self.norm(j))
            self.barrier(self.att_dma(j))

    WKV, W2, PA, XR, KA2 = 8, 44, 116, 140, 156
    XA, KW4, KW2, JR, JW = 3, 4, 5, 6, 7
    PT = 166

    def prod_setup(self):
        I = self.I; t = self.PA
        self.a.label("L_prod")
        self.a.flush_hazards(); self.a.reset_counters()
        I(f"""
        v_lshlrev_b32 v1, 4, v0
        s_mul_i32 {S_K2}, {S_W}, 14336
        s_lshr_b32 {T0}, s2, 3
        s_mul_i32 {T1}, {T0}, 37
        s_lshr_b32 {T1}, {T1}, 8
        s_mul_i32 {T1}, {T1}, 7
        s_sub_u32 {T0}, {T0}, {T1}
        s_lshl_b32 {T0}, {T0}, 11
        s_add_u32 {S_K1}, {S_K2}, {T0 if self.o.wrot else 0}
        s_add_u32 {T1}, {S_K2}, 14336
        s_setprio {self.o.prio[2] if self.o.prio else 0}
        s_waitcnt lgkmcnt(0)
        """)
        for blk in range(7):
            I(f"s_add_u32 m0, {S_K1}, {W_OFF}")
            for n in range(2):
                I(f"buffer_load_dwordx4 v1, {SWQ}, {S_K1} offen offset:{1024*n} lds")
            if blk < 6:
                I(f"""
                s_add_u32 {S_K1}, {S_K1}, 2048
                s_cmp_eq_u32 {S_K1}, {T1}
                s_cselect_b32 {S_K1}, {S_K2}, {S_K1}
                """)
        I(f"s_mul_i32 {S_K1}, {S_W}, 4608")
        I(f"s_add_u32 m0, {S_K1}, {QO_OFF}")
        for off in (0, 1024, 2048, 3072, 3584):
            I(f"buffer_load_dwordx4 v1, {SWO}, {S_K1} offen offset:{off} lds")
        if self.o.prefetch_code:
            I("s_getpc_b64 s[4:5]")
            self.a.label("L_pc")
            I(f"""
            s_sub_u32 s4, s4, L_pc-{KN}
            s_subb_u32 s5, s5, 0
            s_mul_i32 {T0}, {S_W}, {self.o.prefetch_code}
            v_mul_u32_u24 v{t}, {self.o.prefetch_code // 64}, v0
            v_add_u32 v{t}, {T0}, v{t}
            global_load_dword v{self.KA2}, v{t}, s[4:5]
            """)
        G, N = t, t + 1
        I(f"""
        v_lshrrev_b32 v{G}, 4, v0
        v_and_b32 v{N}, 15, v0
        v_lshrrev_b32 v{t+2}, 2, v{N}
        v_and_b32 v{t+3}, 2, v{t+2}
        v_xor_b32 v{t+3}, v{t+3}, v{G}
        v_mul_u32_u24 v{t+4}, 12, v{N}
        v_add_lshl_u32 v{self.XA}, v{t+3}, v{t+4}, 4
        v_add_u32 v{self.XA}, {X_OFF}, v{self.XA}
        s_mul_i32 {T1}, {S_W}, 96
        s_add_u32 {T1}, {T1}, {KV_OFF}
        v_mul_u32_u24 v{t+3}, 400, v{N}
        v_add_u32 v{t+3}, {T1}, v{t+3}
        v_lshl_add_u32 v{self.KW4}, v{G}, 4, v{t+3}
        v_lshl_add_u32 v{self.KW2}, v{G}, 3, v{t+3}
        v_add_u32 v{self.KW2}, 64, v{self.KW2}
        s_and_b32 {S_C}, {S_W}, 1
        v_lshl_add_u32 v{t+3}, v{G}, 3, v{t+2}
        v_mul_u32_u24 v{t+3}, 576, v{t+3}
        v_add_u32 v{t+3}, {W_OFF}, v{t+3}
        v_and_b32 v{t+5}, 3, v0
        s_mul_i32 {T1}, {S_W}, 48
        s_add_u32 {T1}, {T1}, 192
        v_lshl_add_u32 v{t+6}, v{t+5}, 4, {T1}
        v_cmp_eq_u32 vcc, 3, v{t+5}
        v_add_u32 v{t+7}, 144, v{t+6}
        v_lshl_add_u32 v{t+8}, v{t+5}, 3, {T1}
        v_cndmask_b32 v{t+6}, v{t+6}, v{t+7}, vcc
        v_add_u32 v{self.PT}, v{t+6}, v{t+3}
        v_add3_u32 v{self.PT+1}, v{t+8}, v{t+3}, 64
        v_add_u32 v{self.PT+1}, 144, v{self.PT+1}
        v_mul_u32_u24 v{t+5}, 48, v{t+5}
        v_add_u32 v1, v{t+5}, v{t+3}
        s_mul_i32 {T1}, {S_C}, 3072
        v_lshl_add_u32 v{t+3}, v{N}, 4, {T1}
        s_cmp_ge_u32 {S_W}, 2
        s_cbranch_scc1 L_prodO
        """)
    def wkv_frags(self):
        r = []
        for ks in range(3):
            for tl in range(3):
                for e in range(2):
                    ad = self.PT if tl < 2 else self.PT + 1
                    off = ks * 18432 + e * 2304 + (8 if tl == 1 else 0)
                    r.append(f"ds_read_b64_tr_b16 {vr(self.WKV + 12*ks + 4*tl + 2*e, 2)}, v{ad} offset:{off}")
        return r
    def wq_frags(self):
        r = []
        for ks in range(3):
            for tl in range(6):
                for e in range(2):
                    off = ks * 18432 + e * 2304 + 8 * tl
                    r.append(f"ds_read_b64_tr_b16 {vr(self.W2 + 24*ks + 4*tl + 2*e, 2)}, v1 offset:{off}")
        return r

    def xavail(self, px):
        b = px // 80
        if px < 100: return -2
        return {1: -1, 2: 0, 3: self.o.b3av, 4: self.o.b4av}[b]

    def run_prod(self, phases, extra):
        frags = [(ph, n, ks) for ph in sorted(phases) for n in range(len(phases[ph])) for ks in range(3)]
        st = dict(issued=0)
        def rd(upto, cur):
            while st["issued"] < min(upto, len(frags)):
                ph, n, ks = frags[st["issued"]]; job = phases[ph][n]
                if job["avail"] > cur: break
                if ks == 0 and job.get("pre"): self.I(job["pre"])
                ad, off = job["reads"][ks]
                self.I(f"ds_read_b128 {vr(self.XR + 4*(st['issued']&3), 4)}, v{ad} offset:{off}")
                st["issued"] += 1
        i = 0
        for ph in sorted(phases):
            fill, rate, tail = extra.get(ph, ((), 0, ()))
            fill = list(fill)
            rd(i + 4, ph)
            pend = []
            for n, job in enumerate(phases[ph]):
                if job.get("needfill"):
                    self.E(fill); fill = []
                nm = job["nm"]; delay = 2
                quota = len(pend) / (3 * nm - delay); acc = 0.0; slot = 0
                for ks in range(3):
                    for m in job["mf"](ks, vr(self.XR + 4 * (i & 3), 4)):
                        self.I(m)
                        if rate >= 1:
                            for _ in range(int(rate)):
                                if fill: self.I(fill.pop(0))
                        elif rate and fill and slot % round(1 / rate) == 1: self.I(fill.pop(0))
                        if slot >= delay:
                            acc += quota
                            while pend and acc >= 0.999:
                                x = pend.pop(0); acc -= 1
                                self.I(x)
                                while "exec, s" in x or (pend and "exec, -1" in pend[0]):
                                    x = pend.pop(0); acc -= 1; self.I(x)
                        if slot % nm == 0: rd(i + 4, ph)
                        slot += 1
                    i += 1
                self.E(pend)
                pend = list(job["post"])
                self.dstamp(3)
            rd(i + 4, ph)
            self.E(pend); self.E(fill); self.E(tail)
            self.dstamp(3)
            if ph < 7: self.barrier()

    def kv_job(self, k, a):
        hi = k >= 15
        xo = (k - 15 if hi else k) * 3072
        wo = ((k + 5) % 10) * 6400
        def mf(ks, x):
            return [f"{MF} {vr(a+4*tl,4)}, {vr(self.WKV+12*ks+4*tl,4)}, {x}, {'0' if ks == 0 else vr(a+4*tl,4)}" for tl in range(3)]
        post = [f"v_cvt_pk_bf16_f32 v{a}, v{a}, v{a+1}", f"v_cvt_pk_bf16_f32 v{a+1}, v{a+2}, v{a+3}",
                f"v_cvt_pk_bf16_f32 v{a+2}, v{a+4}, v{a+5}", f"v_cvt_pk_bf16_f32 v{a+3}, v{a+6}, v{a+7}",
                f"ds_write_b128 v{self.KW4}, {vr(a,4)} offset:{wo}",
                f"v_cvt_pk_bf16_f32 v{a+8}, v{a+8}, v{a+9}", f"v_cvt_pk_bf16_f32 v{a+9}, v{a+10}, v{a+11}",
                f"ds_write_b64 v{self.KW2}, {vr(a+8,2)} offset:{wo}"]
        return dict(reads=[(self.XA, xo + 64 * ks) for ks in range(3)], mf=mf, nm=3, post=post, avail=self.xavail(16 * k + 15),
                    pre=f"v_add_u32 v{self.XA}, {15*3072}, v{self.XA}" if k == 15 else None)
    def q_job(self, j):
        a = self.PA
        def mf(ks, x):
            return [f"{MF} {vr(a+4*tl,4)}, {vr(self.W2+24*ks+4*tl,4)}, {x}, {'0' if ks == 0 else vr(a+4*tl,4)}" for tl in range(6)]
        post = []
        for i in range(3):
            post += [f"v_mul_f32 v{a+8*i+k}, {S_QS}, v{a+8*i+k}" for k in range(8)]
            post += [f"v_cvt_pk_bf16_f32 v{a+8*i+k}, v{a+8*i+2*k}, v{a+8*i+2*k+1}" for k in range(4)]
            post += [f"ds_write_b128 v{self.JW}, {vr(a+8*i,4)} offset:{QO_OFF + 6144*(j%3) + 256*i}"]
        ad = self.JR if j % 2 == 0 else 2
        return dict(reads=[(ad, 7680 * j + 64 * ks) for ks in range(3)], mf=mf, nm=6, post=post,
                    avail=self.xavail(20 * (2 * j + 4) + 19), needfill=(j == 0))
    def o_job(self, j):
        a = self.PA
        def mf(ks, x):
            return [f"{MF} {vr(a+4*tl,4)}, {x}, {vr(self.W2+24*ks+4*tl,4)}, {'0' if ks == 0 else vr(a+4*tl,4)}" for tl in range(6)]
        post = [f"s_mul_i32 {T0}, {S_XST}, {j}", f"s_ashr_i32 {T0}, {T0}, 1", f"s_add_u32 {T0}, {T0}, {S_O0}"]
        for r, d in enumerate((0, 0, a, a + 4)):
            post += [f"v_cmp_class_f32 vcc, v{a+r}, {S_QS}"]
            post += [f"v_cvt_pk_bf16_f32 v{d+i}, v{a+8*i+r}, v{a+8*i+4+r}" for i in range(3)]
            post += [f"s_or_b64 {S_MK0}, {S_MK0}, vcc"]
            if r == 3: post.append(f"s_mov_b64 exec, {S_M48}")
            post.append(f"buffer_store_dwordx3 {vr(d,3)}, v{self.JW}, {SOUT}, {T0} offen offset:{384*r}{self.o.stf}")
            if r == 3: post.append("s_mov_b64 exec, -1")
        return dict(reads=[(self.JR, QO_OFF + 6144 * ((j + 1) % 3) + 1024 * ks) for ks in range(3)], mf=mf, nm=6, post=post, avail=j + 1)
    def groups(self, ph):
        if ph == -2: return range(0, 5)
        if ph == -1: return range(5, 10)
        if ph > 5: return range(0)
        cum = lambda p: (5 * (p + 5) + 1) // 2
        return range(cum(ph - 1), cum(ph))
    def phase_jobs(self, ph, big, pos):
        g = list(self.groups(ph)); jobs = []
        for n, k in enumerate(g):
            d = (pos - 1 - n) if n < pos else (n - pos)
            jobs.append(self.kv_job(k, self.KA2 if d % 2 == 0 else self.PA) if big else self.kv_job(k, self.PA + 12 * (n & 1)))
        if big: jobs.insert(min(pos, len(g)), big)
        return jobs

    def prod_q(self):
        I = self.I; t = self.PA; G, N = t, t + 1
        I(f"""
        v_mul_u32_u24 v{t+5}, 768, v{G}
        v_add_u32 v{self.JW}, v{t+5}, v{t+3}
        v_lshrrev_b32 v{t+5}, 3, v{N}
        v_and_b32 v{t+6}, 7, v{N}
        v_min_u32 v{t+6}, 6, v{t+6}
        v_mad_u32_u24 v{t+5}, v{t+5}, 20, v{t+6}
        s_mul_i32 {T1}, {S_C}, 7
        s_add_u32 {T1}, {T1}, 63
        v_add_u32 v{t+5}, {T1}, v{t+5}
        v_lshrrev_b32 v{t+6}, 2, v{t+5}
        v_and_b32 v{t+6}, 2, v{t+6}
        v_xor_b32 v{t+6}, v{t+6}, v{G}
        v_mul_u32_u24 v{t+5}, 12, v{t+5}
        v_add_lshl_u32 v{self.JR}, v{t+5}, v{t+6}, 4
        v_add_u32 v{self.JR}, {X_OFF}, v{self.JR}
        v_xor_b32 v2, 32, v{self.JR}
        s_mov_b32 {S_QS}, {f32hex(24 ** -0.5 * 1.4426950408889634)}
        """)
        I("s_waitcnt vmcnt(0)\ns_barrier")
        self.dstamp(4)
        self.E(self.wkv_frags() + self.wq_frags())
        self.barrier()
        phases = {ph: self.phase_jobs(ph, self.q_job(ph + 2) if ph <= 4 else None, 1) for ph in range(-2, 7)}
        self.run_prod(phases, {})
        I("s_branch L_fin")

    def wo_frags(self):
        def reads(ks):
            tb = (self.PA, self.XR)[ks & 1]
            for jj in range(4):
                for c in range(3):
                    o = 96 * (jj & 1) + c
                    self.I(f"ds_read2_b32 {vr(tb + 2*(3*jj+c), 2)}, v{1 + (jj >> 1)} offset0:{o} offset1:{o+48}")
            if ks < 2:
                self.I("v_add_u32 v1, 6144, v1\nv_add_u32 v2, 6144, v2")
        def perms(ks):
            tb = (self.PA, self.XR)[ks & 1]; b = self.W2 + 24 * ks
            for jj in range(4):
                for c in range(3):
                    x = tb + 2 * (3 * jj + c)
                    self.I(f"v_perm_b32 v{b + 8*c + jj}, v{x+1}, v{x}, {S_PLO}")
                    self.I(f"v_perm_b32 v{b + 8*c + 4 + jj}, v{x+1}, v{x}, {S_PHI}")
        reads(0); reads(1); perms(0); reads(2); perms(1); self.E(self.wkv_frags()); perms(2)

    def prod_o(self):
        I = self.I; t = self.PA; G, N = t, t + 1
        self.a.label("L_prodO")
        self.a.flush_hazards(); self.a.reset_counters()
        I(f"""
        v_lshl_add_u32 v{self.JR}, v{G}, 8, v{t+3}
        v_mul_u32_u24 v{t+5}, 1536, v{G}
        v_add_u32 v1, v{t+5}, v{t+4}
        v_add_u32 v2, 768, v1
        v_lshrrev_b32 v{t+5}, 1, v{G}
        s_and_b32 {T1}, {S_FM}, 1
        v_xor_b32 v{t+5}, {T1}, v{t+5}
        v_mad_u32_u24 v{t+5}, v{t+5}, {S_RS}, v{t+4}
        v_and_b32 v{t+6}, 1, v{G}
        v_mul_u32_u24 v{t+6}, 1536, v{t+6}
        s_mul_i32 {T1}, {S_C}, 7
        s_add_u32 {T1}, {T1}, {S_C0M3}
        s_add_u32 {T1}, {T1}, 3
        s_mul_i32 {T1}, {T1}, 384
        v_add3_u32 v{self.JW}, v{t+5}, v{t+6}, {T1}
        s_mov_b64 {S_MK0}, 0
        s_movk_i32 {S_QS}, 0x207
        s_mov_b32 s44, 0xffff
        s_mov_b32 s45, 0xffff
        s_mov_b32 {S_PLO}, 0x05040100
        s_mov_b32 {S_PHI}, 0x07060302
        """)
        I("s_waitcnt vmcnt(0)\ns_barrier")
        self.dstamp(4)
        self.wo_frags()
        self.barrier()
        phases = {ph: self.phase_jobs(ph, self.o_job(ph - 1) if ph >= 1 else None, 1) for ph in range(-2, 8)}
        self.run_prod(phases, {})
        I(f"""
        v_mov_b32 v0, {FLAG_OFF}
        s_mov_b64 exec, {S_MK0}
        ds_write_b32 v0, v0
        s_mov_b64 exec, -1
        """)

    def finish(self):
        I = self.I; a = self.a
        a.label("L_fin")
        a.flush_hazards(); a.reset_counters()
        self.nst = 11
        self.barrier()
        I(f"""
        v_mov_b32 v1, {FLAG_OFF}
        ds_read_b32 v1, v1
        s_waitcnt lgkmcnt(0)
        v_readfirstlane_b32 {T0}, v1
        s_cmp_lg_u32 {S_MODE}, 0
        s_cselect_b32 {T0}, 0, {T0}
        s_cmp_eq_u32 {T0}, 0
        s_cbranch_scc1 L_done
        s_mov_b32 {S_MODE}, 1
        v_mbcnt_lo_u32_b32 v0, -1, 0
        v_mbcnt_hi_u32_b32 v0, -1, v0
        s_waitcnt vmcnt(0)
        s_barrier
        s_branch L_restart
        """)
        a.label("L_done")
        if self.o.stamps: self.dump_stamps()
        a.label("L_end")
        I("s_endpgm")

    def dump_stamps(self):
        I = self.I
        I(f"""
        s_waitcnt vmcnt(0)
        s_memtime s[{S_ST+24}:{S_ST+25}]
        s_memrealtime s[8:9]
        s_load_dwordx2 s[4:5], s[0:1], {40 if self.o.dbg else 48}
        s_mov_b32 s6, {256 if self.o.dbg else 0x100000}
        s_mov_b32 s7, 0x20000
        s_mul_i32 {T0}, s2, 12
        s_add_u32 {T0}, {T0}, {S_W}
        s_lshl_b32 {T0}, {T0}, 6
        s_waitcnt lgkmcnt(0)
        """)
        for i in range(13):
            I(f"s_sub_u32 {T1}, s{S_ST+2*i}, s68\nv_mov_b32 v{8+i}, {T1}")
        if self.o.dbg:
            I("""
            s_not_b32 s66, s66
            v_mov_b32 v21, s8
            v_mov_b32 v22, s66
            v_mov_b32 v18, 0
            v_mov_b32 v1, 0
            s_mov_b64 exec, 1
            """)
            for i in range(15):
                self.a.raw(f"    buffer_atomic_umax v{8+i}, v1, s[4:7], 0 offen offset:{4*i}")
            return
        I(f"""
        v_mov_b32 v21, s68
        v_mov_b32 v22, 0
        v_mov_b32 v23, 0
        v_mov_b32 v1, 0
        s_mov_b64 exec, 1
        buffer_store_dwordx4 v[8:11], v1, s[4:7], {T0} offen
        buffer_store_dwordx4 v[12:15], v1, s[4:7], {T0} offen offset:16
        buffer_store_dwordx4 v[16:19], v1, s[4:7], {T0} offen offset:32
        buffer_store_dwordx4 v[20:23], v1, s[4:7], {T0} offen offset:48
        """)

    def build(self):
        a = self.a; I = self.I
        self.start()
        self.nst = 0
        self.att_setup()
        I(f"s_cmp_lg_u32 {S_MODE}, 0")
        I("s_cbranch_scc1 L_slow")
        self.mfprio = bool(self.o.prio) and self.o.prio[0] != self.o.prio[1]
        if self.o.prio and not self.mfprio: I(f"s_setprio {self.o.prio[0]}")
        self.att_fast()
        self.mfprio = False
        I("s_branch L_fin")
        self.nst = 0
        self.prod_setup()
        self.prod_q()
        self.nst = 0
        self.prod_o()
        self.finish()
        a.label("L_slow")
        a.flush_hazards(); a.reset_counters()
        self.nst = 2
        self.att_slow()
        I("s_branch L_fin")
        a.raw(f""".section .rodata,"a"
.p2align 6
.amdhsa_kernel {KN}
  .amdhsa_next_free_vgpr 168
  .amdhsa_next_free_sgpr 102
  .amdhsa_accum_offset 168
  .amdhsa_group_segment_fixed_size 0
  .amdhsa_kernarg_size 56
  .amdhsa_user_sgpr_count 2
  .amdhsa_user_sgpr_kernarg_segment_ptr 1
  .amdhsa_system_sgpr_workgroup_id_x 1
.end_amdhsa_kernel""")
        return a.text()

if __name__ == "__main__":
    o = Opt()
    out = "standalone__neighborhood_dinat__vision.s"
    for arg in sys.argv[1:]:
        if "=" in arg:
            k, v = arg.split("=")
            if k == "out": out = v
            else: setattr(o, k, eval(v))
    g = Gen(o)
    open(out, "w").write(g.build())
    print("written", out, "nops", g.a.nnop)
```
